```python
import torch

def _softmax(x, axis=-1):
    return torch.softmax(x, dim=axis)
def _gelu(x):
    return torch.nn.functional.gelu(x, approximate="tanh")
def _silu(x):
    return torch.nn.functional.silu(x)
def _sigmoid(x):
    return torch.sigmoid(x)
def _layernorm(x, axis=-1, eps=1e-5):
    m = x.mean(dim=axis, keepdim=True)
    v = x.var(dim=axis, keepdim=True, unbiased=False)
    return (x - m) / torch.sqrt(v + eps)
def _scatter_add(tgt, idx, src, axis=0):
    return tgt.clone().index_add_(axis, idx, src)
def _segment_sum(src, seg, n):
    out = torch.zeros((n,) + src.shape[1:], dtype=src.dtype)
    return out.index_add_(0, seg, src)
def _pad(x, pw):
    flat = tuple(v for pair in reversed(pw) for v in pair)
    return torch.nn.functional.pad(x, flat)

kernel_name = 'parallel_sum__gqa_block_cached__dense_activation_squared_relu__decode'

def setup_inputs():

    _w = (lambda a: (lambda t: t.to(torch.bfloat16) if t.is_floating_point() else t)(torch.as_tensor(a)))
    def _A_setup():
        B, Sq, D = 2, 1, 576
        Hq, Hkv, Sk, Dh = 32, 16, 32768, 128
        assert Hq % Hkv == 0, (Hq, Hkv)
        return {
            "x": _w((lambda *s: torch.randn(*s, dtype=torch.bfloat16) * 0.05)(B, Sq, D)),
            "k_cache": _w((lambda *s: torch.randn(*s, dtype=torch.bfloat16) * 3.2)(B, Hkv, Sk, Dh)),
            "v_cache": _w((lambda *s: torch.randn(*s, dtype=torch.bfloat16) * 1.6)(B, Hkv, Sk, Dh)),
            "wq": _w((lambda *s: torch.randn(*s, dtype=torch.bfloat16) * 3.2)(D, Hq * Dh) * (D ** -0.5)),
            "wo": _w((lambda *s: torch.randn(*s, dtype=torch.bfloat16) * 1.6)(Hq * Dh, D) * ((Hq * Dh) ** -0.5)),
        }
    _A_in = _A_setup()

    def _B_setup():
        B, S, D, F = 2, 1, 576, 4608
        return {
            "x": _w((lambda *s: torch.randn(*s, dtype=torch.bfloat16) * 0.05)(B, S, D)),
            "w1": _w((lambda *s: torch.randn(*s, dtype=torch.bfloat16) * 0.05)(D, F)),
            "b1": _w((lambda *s: torch.randn(*s, dtype=torch.bfloat16) * 0.05)(F)),
            "w2": _w((lambda *s: torch.randn(*s, dtype=torch.bfloat16) * 0.05)(F, D)),
            "b2": _w((lambda *s: torch.randn(*s, dtype=torch.bfloat16) * 0.05)(D)),
        }
    _B_in = _B_setup()

    return {
        "A_x": _A_in["x"],
        "A_k_cache": _A_in["k_cache"],
        "A_v_cache": _A_in["v_cache"],
        "A_wq": _A_in["wq"],
        "A_wo": _A_in["wo"],
        "B_x": _B_in["x"],
        "B_w1": _B_in["w1"],
        "B_b1": _B_in["b1"],
        "B_w2": _B_in["w2"],
        "B_b2": _B_in["b2"],
    }

def reference(A_x, A_k_cache, A_v_cache, A_wq, A_wo, B_x, B_w1, B_b1, B_w2, B_b2):
    def _A_ref(x, k_cache, v_cache, wq, wo):
        B, Sq, D = x.shape
        Hq, Dh = 32, 128
        Hkv = k_cache.shape[1]
        rep = Hq // Hkv
        q = (lambda x, *d: x.permute(*d))((x @ wq).reshape(B, Sq, Hq, Dh), 0, 2, 1, 3)
        k = (lambda x, n, axis: torch.repeat_interleave(x, n, dim=axis))(k_cache, rep, axis=1)
        v = (lambda x, n, axis: torch.repeat_interleave(x, n, dim=axis))(v_cache, rep, axis=1)
        scores = torch.einsum("bhqd,bhkd->bhqk", q, k) * (Dh ** -0.5)
        p = _softmax(scores, axis=-1)
        o = torch.einsum("bhqk,bhkd->bhqd", p, v)
        return (lambda x, *d: x.permute(*d))(o, 0, 2, 1, 3).reshape(B, Sq, Hq * Dh) @ wo

    def _B_ref(x, w1, b1, w2, b2):
        h = torch.einsum("bsd,df->bsf", x, w1) + b1
        zero = torch.zeros_like(h)
        r = torch.where(h > zero, h, zero)
        h = r * r
        out = torch.einsum("bsf,fd->bsd", h, w2) + b2
        return out

    x = A_x
    xn = _layernorm(x, axis=-1)
    return x + _A_ref(xn, A_k_cache, A_v_cache, A_wq, A_wo) + _B_ref(xn, B_w1, B_b1, B_w2, B_b2)
```

```python
import re
TRANS = ('v_exp_f32','v_log_f32','v_rcp_f32','v_rsq_f32','v_sqrt_f32','v_sin_f32','v_cos_f32')
def regs_of(op):
    op = op.strip()
    neg = op.lstrip('-')
    m = re.fullmatch(r'abs\((.*)\)', neg)
    if m: neg = m.group(1)
    m = re.fullmatch(r'([vsa])(\d+)', neg)
    if m: return {(m.group(1), int(m.group(2)))}
    m = re.fullmatch(r'([vsa])\[(\d+):(\d+)\]', neg)
    if m: return {(m.group(1), i) for i in range(int(m.group(2)), int(m.group(3))+1)}
    if neg in ('vcc','vcc_lo','vcc_hi'): return {('s','vcc')}
    if neg in ('exec','exec_lo','exec_hi'): return {('s','exec')}
    if neg == 'm0': return {('s','m0')}
    return set()
def split_ops(s):
    out, depth, cur = [], 0, ''
    for ch in s:
        if ch in '[(': depth += 1
        if ch in '])': depth -= 1
        if ch == ',' and depth == 0: out.append(cur.strip()); cur = ''
        else: cur += ch
    if cur.strip(): out.append(cur.strip())
    return out
class Ins:
    def __init__(s, text):
        s.text = text
        t = text.strip()
        parts = t.split(None, 1)
        s.op = parts[0]
        rest = parts[1] if len(parts) > 1 else ''
        ops = split_ops(rest)
        s.mods = ''
        if ops:
            last = ops[-1].split(None, 1)
            ops[-1] = last[0]
            if len(last) > 1: s.mods = last[1]
        s.ops = ops
        op = s.op
        s.kind = 'other'; s.w = set(); s.r = set()
        R = [regs_of(o) for o in ops]
        def U(l):
            o = set()
            for x in l: o |= x
            return o
        if op.startswith('v_mfma'):
            s.kind = 'mfma'; s.w = R[0]; s.a = R[1]; s.b = R[2]; s.c = R[3] if len(R) > 3 else set(); s.r = s.a | s.b | s.c
        elif op.startswith('v_'):
            s.kind = 'valu'
            s.dpp = ('_dpp' in op) or any(k in s.mods for k in ('quad_perm','row_','wave_'))
            s.trans = any(op.startswith(t) for t in TRANS)
            s.permlane = op.startswith('v_permlane')
            s.readlane = op.startswith('v_readlane') or op.startswith('v_readfirstlane')
            if op.startswith('v_cmp'):
                s.w = R[0]; s.r = U(R[1:])
            elif s.permlane:
                s.w = R[0] | R[1]; s.r = R[0] | R[1]
            elif op.startswith(('v_add_co','v_sub_co','v_addc_co','v_subb_co','v_subrev_co')):
                s.w = R[0] | R[1]; s.r = U(R[2:])
            elif op.startswith('v_cndmask') and len(ops) == 3:
                s.w = R[0]; s.r = U(R[1:]) | {('s','vcc')}
            else:
                s.w = R[0]; s.r = U(R[1:])
                if op.startswith(('v_fmac','v_mac','v_writelane','v_dot2c')) or 'dpp' in op: s.r |= R[0]
        elif op.startswith('ds_'):
            s.kind = 'ds'
            if op.startswith(('ds_read','ds_bpermute','ds_permute','ds_swizzle')): s.w = R[0]; s.r = U(R[1:])
            else: s.r = U(R)
        elif op.startswith('buffer_') or op.startswith('global_'):
            s.kind = 'vmem'
            if '_load' in op and re.search(r'\blds\b', s.mods): s.r = U(R) | {('s','m0')}
            elif '_load' in op: s.w = R[0]; s.r = U(R[1:])
            elif '_store' in op:
                s.r = U(R)
                s.data = R[0] if op.startswith('buffer_') else R[1]
                s.wide = op.endswith(('x3','x4'))
            elif '_atomic' in op:
                if 'sc0' in s.mods and op.startswith('global_'): s.w = R[0]; s.r = U(R[1:])
                else:
                    s.r = U(R)
                    if 'sc0' in s.mods: s.w = R[0]
        elif op.startswith('s_'):
            s.kind = 'salu'
            if op.startswith(('s_cmp','s_cbranch','s_branch','s_waitcnt','s_nop','s_barrier','s_endpgm','s_sleep','s_setprio','s_bitcmp')):
                s.r = U(R)
            elif op.startswith('s_load') or op.startswith('s_memtime') or op.startswith('s_memrealtime'):
                s.kind = 'smem'; s.w = R[0]; s.r = U(R[1:])
            elif 'saveexec' in op:
                s.w = R[0] | {('s','exec')}; s.r = U(R[1:]) | {('s','exec')}
            else:
                s.w = R[0] if R else set(); s.r = U(R[1:])
        s.states = 1
        if op == 's_nop': s.states = int(ops[0], 0) + 1
def need(prod, cons):
    n = 0
    pv = {r for r in prod.w if r[0] in 'va'}
    ps = {r for r in prod.w if r[0] == 's'}
    cr, cw = cons.r, cons.w
    if prod.kind == 'valu':
        if cons.kind == 'mfma' and pv & cr: n = max(n, 2)
        if cons.kind == 'valu':
            if prod.trans and pv & (cr): n = max(n, 1)
            if cons.dpp and pv & cr: n = max(n, 2)
            if cons.permlane and pv & cr: n = max(n, 2)
            if cons.readlane and pv & cr: n = max(n, 1)
            if ps & cr: n = max(n, 2)
            if ps & cr and cons.op.startswith(('v_readlane','v_writelane')): n = max(n, 4)
            if ('s','exec') in ps and cons.dpp: n = max(n, 5)
        if cons.kind == 'mfma' and ('s','exec') in ps: n = max(n, 4)
        if cons.kind == 'vmem' and ps & cr: n = max(n, 5)
        if cons.kind in ('salu','smem') and ps & cr: n = max(n, 1)
    if prod.kind == 'mfma':
        P = 4
        if cons.kind == 'mfma':
            if pv & (cons.a | cons.b): n = max(n, 8)
            if pv & cons.c and not (prod.w == cons.c): n = max(n, 6)
            if pv & cons.w and not (prod.w == cons.w): n = max(n, 8)
        elif cons.kind in ('valu','vmem','ds'):
            if pv & (cr | cw): n = max(n, 8)
        if cons.kind == 'valu' and (prod.c & cw): n = max(n, 3)
    if prod.kind == 'vmem' and getattr(prod, 'wide', False):
        if cons.kind == 'valu' and (prod.data & cw): n = max(n, 2)
        elif prod.data & cw: n = max(n, 1)
    if prod.kind == 'salu' and ('s','m0') in prod.w and cons.kind in ('vmem','ds') : n = max(n, 1)
    return n
class Asm:
    def __init__(s):
        s.lines = []; s.hist = []
        s.nops = 0
    def _pad(s, k):
        while k > 0:
            t = min(k, 16)
            i = Ins(f"s_nop {t-1}"); s.lines.append("  " + i.text); s.hist.append(i); k -= t; s.nops += 1
    def __call__(s, text):
        for ln in text.split('\n'):
            ln = ln.split(';')[0].strip()
            if not ln: continue
            if ln.endswith(':'):
                s.label(ln[:-1]); continue
            if ln.startswith('.'):
                s.lines.append(ln); continue
            i = Ins(ln)
            req = 0; dist = 0
            for p in reversed(s.hist[-24:]):
                r = need(p, i) - dist
                if r > req: req = r
                dist += p.states
                if dist > 20: break
            is_branch = i.op.startswith(('s_cbranch','s_branch','s_setpc'))
            if is_branch: req = max(req, s._drain())
            if req > 0: s._pad(req)
            s.lines.append("  " + ln); s.hist.append(i)
    def _drain(s):
        req = 0; dist = 0
        for p in reversed(s.hist[-24:]):
            worst = 0
            if p.kind == 'mfma': worst = 8
            elif p.kind == 'valu':
                worst = 2 if any(r[0] in 'va' for r in p.w) else 0
                if any(r[0] == 's' for r in p.w): worst = 5
            elif p.kind == 'vmem' and getattr(p, 'wide', False): worst = 2
            req = max(req, worst - dist)
            dist += p.states
            if dist > 20: break
        return req
    def label(s, name):
        r = s._drain()
        if r > 0: s._pad(r)
        s.lines.append(f"{name}:")
    def comment(s, t): s.lines.append("  ; " + t)
    def text(s): return "\n".join(s.lines) + "\n"
```

```python
import sys, struct
from asmlib import *
NAME = "parallel_sum__gqa_block_cached__dense_activation_squared_relu__decode"
def f32(x): return struct.unpack('<I', struct.pack('<f', x))[0]
import math
CSCALE = f32((128 ** -0.5) * math.log2(math.e))
OPT = dict(nt='nt', dbg=0)
for arg in sys.argv[2:]:
    k, v = arg.split('='); OPT[k] = v if not v.lstrip('-').isdigit() else int(v)
NT = OPT['nt']
L_QP = 0x0000
L_AO = 0x0800
L_AML = 0x1800
L_OB = 0x1900
L_XN = 0x2000
L_H2 = 0x5000
LDS_BYTES = 0x5200
W_O = 0
W_ML = 0x40000
W_Y = 0x42000
W_MLP = 0x60000
NMLP = 36
a = Asm()
class VM:
    def __init__(s): s.q = []
    def issue(s, tag): s.q.append(tag)
    def wait(s, tag):
        idx = max(i for i, t in enumerate(s.q) if t == tag)
        n = len(s.q) - 1 - idx
        assert n <= 63
        a(f"s_waitcnt vmcnt({n})"); s.q = s.q[idx+1:]
    def wait_all(s): a("s_waitcnt vmcnt(0)"); s.q = []
def vr(b, n=4): return f"v[{b}:{b+n-1}]"
S0, S1, P, XA, XB, O = 32, 36, 40, 48, 56, 64
Q = 16
KB = [96, 128]; VB = [160, 192]
SEL_LO, SEL_HI, SC = 's59', 's60', 's58'

def xreduce(v, t, op):
    a(f"v_mov_b32 v{t}, v{v}")
    a(f"v_permlane16_swap_b32 v{v}, v{t}")
    a(f"{op} v{v}, v{v}, v{t}")
    a(f"v_mov_b32 v{t}, v{v}")
    a(f"v_permlane32_swap_b32 v{v}, v{t}")
    a(f"{op} v{v}, v{v}, v{t}")
def rowreduce(v, op):
    for m in ("quad_perm:[1,0,3,2]", "quad_perm:[2,3,0,1]", "row_half_mirror", "row_mirror"):
        a(f"{op}_dpp v{v}, v{v}, v{v} {m} row_mask:0xf bank_mask:0xf")

a(f"""
s_cmp_ge_u32 s2, 256
s_cbranch_scc1 L_end
s_load_dwordx16 s[16:31], s[0:1], 0
s_load_dwordx8 s[32:39], s[0:1], 64
s_load_dwordx2 s[40:41], s[0:1], 96
v_lshrrev_b32 v1, 6, v0
v_and_b32 v0, 63, v0
v_readfirstlane_b32 s3, v1
s_and_b32 s4, s2, 7
s_lshl_b32 s4, s4, 1
s_lshr_b32 s8, s2, 3
s_and_b32 s9, s8, 1
s_add_u32 s4, s4, s9
s_bfe_u32 s5, s8, 0x10001
s_lshr_b32 s6, s8, 2
s_lshl_b32 s7, s5, 4
s_add_u32 s7, s7, s4
v_and_b32 v2, 15, v0
v_lshrrev_b32 v3, 4, v0
s_mov_b32 {SEL_LO}, 0x05040100
s_mov_b32 {SEL_HI}, 0x07060302
s_mov_b32 {SC}, {CSCALE:#x}
s_cmp_ge_u32 s3, 4
s_cbranch_scc1 L_aux
""")
a(f"""
v_lshlrev_b32 v4, 8, v2
v_lshl_add_u32 v4, v3, 4, v4
v_lshlrev_b32 v5, 10, v3
v_lshl_add_u32 v5, v2, 4, v5
s_lshl_b32 s8, s7, 23
s_lshl_b32 s9, s6, 20
s_add_u32 s8, s8, s9
s_lshl_b32 s56, s3, 13
s_add_u32 s57, s56, 4096
s_waitcnt lgkmcnt(0)
s_add_u32 s44, s18, s8
s_addc_u32 s45, s19, 0
s_mov_b32 s46, 0x100000
s_mov_b32 s47, 0x20000
s_add_u32 s48, s20, s8
s_addc_u32 s49, s21, 0
s_mov_b32 s50, 0x100000
s_mov_b32 s51, 0x20000
""")
def issueK(slot):
    for t in range(2):
        for jj in range(4):
            a(f"buffer_load_dwordx4 {vr(KB[slot]+(t*4+jj)*4)}, v4, s[44:47], s{56+t} offen offset:{jj*64} {NT}")
def issueV(slot):
    for t in range(2):
        for r in range(4):
            a(f"buffer_load_dwordx4 {vr(VB[slot]+(t*4+r)*4)}, v5, s[48:51], s{56+t} offen offset:{r*256} {NT}")
def advance():
    a("s_add_u32 s56, s56, 0x8000\ns_add_u32 s57, s57, 0x8000")
issueK(0); issueV(0); advance(); issueK(1); issueV(1); advance()
a("s_branch L_att_main")

a.label("L_aux")
a(f"""
s_sub_u32 s3, s3, 4
s_and_b32 s8, s3, 1
s_lshr_b32 s9, s3, 1
""")
a(f"""
v_lshlrev_b32 v4, 3, v0
v_add_u32 v5, 0x200, v4
v_add_u32 v6, 0x400, v4
v_cmp_gt_u32 vcc, 16, v0
v_mov_b32 v7, 0x40000000
v_cndmask_b32 v6, v7, v6, vcc
""")
def set_voffs(stride, sconst):
    a(f"s_mov_b32 s12, {8*stride}")
    a(f"v_mul_lo_u32 v8, v3, s12")
    a(f"v_lshl_add_u32 v8, v2, 4, v8")
    a(f"v_add_u32 v8, {sconst}, v8")
    for j in range(1, 8):
        a(f"v_add_u32 v{8+j}, {j*stride}, v8")
RING5 = [96, 128, 160, 192, 224]
def issueW(vm, tag, base, srd, soff, extra=''):
    for j in range(8):
        a(f"buffer_load_dwordx4 {vr(base+j*4)}, v{8+j}, s[{srd}:{srd+3}], {soff} offen {extra}")
        vm.issue(tag)
def gemv_tile(base, A, first):
    for i in range(4):
        X = XA if i % 2 == 0 else XB
        for jj in range(4):
            a(f"v_perm_b32 v{X+jj}, v{base+(2*jj+1)*4+i}, v{base+(2*jj)*4+i}, {SEL_LO}")
        for jj in range(4):
            a(f"v_perm_b32 v{X+4+jj}, v{base+(2*jj+1)*4+i}, v{base+(2*jj)*4+i}, {SEL_HI}")
        for hlf in range(2):
            D = vr(O+(2*i+hlf)*4)
            a(f"v_mfma_f32_16x16x32_bf16 {D}, {vr(A)}, {vr(X+4*hlf)}, {'0' if first else D}")
def layernorm(vm, sb, ldsbase_v):
    vm.wait('x')
    for k in range(6):
        a(f"v_lshlrev_b32 v{24+2*k}, 16, v{16+k}")
        a(f"v_and_b32 v{25+2*k}, 0xffff0000, v{16+k}")
    a("v_add_f32 v36, v24, v25")
    for k in range(2, 12): a(f"v_add_f32 v36, v36, v{24+k}")
    rowreduce(36, "v_add_f32"); xreduce(36, 37, "v_add_f32")
    a(f"v_mul_f32 v36, {f32(1.0/576):#x}, v36")
    a("v_cmp_gt_u32 vcc, 16, v0")
    a("v_mov_b32 v38, 0")
    for k in range(12):
        a(f"v_sub_f32 v39, v{24+k}, v36")
        if k >= 8: a("v_cndmask_b32 v39, 0, v39, vcc")
        a("v_fmac_f32 v38, v39, v39")
    rowreduce(38, "v_add_f32"); xreduce(38, 37, "v_add_f32")
    a(f"v_mul_f32 v38, {f32(1.0/576):#x}, v38")
    a("v_cvt_pk_bf16_f32 v37, v36, v38")
    a("v_lshlrev_b32 v36, 16, v37")
    a("v_and_b32 v38, 0xffff0000, v37")
    a(f"v_add_f32 v38, {f32(1e-5):#x}, v38")
    a("v_cvt_pk_bf16_f32 v38, v38, v38\nv_lshlrev_b32 v38, 16, v38")
    a("v_sqrt_f32 v38, v38")
    a("v_cvt_pk_bf16_f32 v38, v38, v38\nv_lshlrev_b32 v38, 16, v38")
    a("v_rcp_f32 v38, v38")
    for k in range(6):
        a(f"v_sub_f32 v40, v{24+2*k}, v36\nv_sub_f32 v41, v{25+2*k}, v36")
        a("v_cvt_pk_bf16_f32 v40, v40, v41")
        a("v_and_b32 v41, 0xffff0000, v40\nv_lshlrev_b32 v40, 16, v40")
        a("v_mul_f32 v40, v40, v38\nv_mul_f32 v41, v41, v38")
        a(f"v_cvt_pk_bf16_f32 v{16+k}, v40, v41")
    for i in range(3):
        a(f"ds_write_b64 v{ldsbase_v}, v[{16+2*i}:{17+2*i}] offset:{i*512}")
def issue_x(vm, sb):
    a(f"s_mul_i32 s13, {sb}, 1152")
    for i, v in enumerate((4, 5, 6)):
        a(f"buffer_load_dwordx2 v[{16+2*i}:{17+2*i}], v{v}, s[44:47], s13 offen"); vm.issue('x')

vm = VM()
a("s_lshl_b32 s10, s4, 9\ns_lshl_b32 s11, s8, 8\ns_add_u32 s10, s10, s11")
set_voffs(8192, 's10')
a(f"""
s_mul_i32 s14, s9, {9*32*8192}
s_waitcnt lgkmcnt(0)
s_mov_b32 s44, s16
s_mov_b32 s45, s17
s_mov_b32 s46, 2304
s_mov_b32 s47, 0x20000
s_mov_b32 s48, s22
s_mov_b32 s49, s23
s_mov_b32 s50, {576*8192}
s_mov_b32 s51, 0x20000
s_mov_b32 s52, s40
s_mov_b32 s53, s41
s_mov_b32 s54, 0x40000000
s_mov_b32 s55, 0x20000
""")
issue_x(vm, 's5')
def wq_issue(t):
    issueW(vm, ('wq', t), RING5[t % 5], 48, 's14')
    a(f"s_add_u32 s14, s14, {32*8192}")
for t in range(5): wq_issue(t)
a(f"""
s_mul_i32 s12, s3, 3072
s_mul_i32 s13, s5, 1536
s_add_u32 s12, s12, s13
s_add_u32 s12, s12, {L_XN}
v_lshl_add_u32 v7, v0, 3, s12
s_mul_i32 s13, s9, {9*64}
s_add_u32 s13, s13, s12
v_lshl_add_u32 v1, v3, 4, s13
""")
layernorm(vm, 's5', 7)
a("s_waitcnt lgkmcnt(0)")
AOP = [16, 20]
for t in range(9):
    a(f"ds_read_b128 {vr(AOP[t%2])}, v1 offset:{t*64}")
    vm.wait(('wq', t))
    a("s_waitcnt lgkmcnt(0)")
    gemv_tile(RING5[t % 5], AOP[t % 2], t == 0)
    if t + 5 < 9: wq_issue(t + 5)
for e in range(8): a(f"v_mov_b32 v{24+e}, v{O+4*e}")
a(f"s_lshl_b32 s12, s3, 9\nv_lshl_add_u32 v4, v2, 5, s12")
a(f"ds_write_b128 v4, v[24:27] offset:{L_QP}\nds_write_b128 v4, v[28:31] offset:{L_QP+16}")
a("s_waitcnt lgkmcnt(0)\ns_barrier")
a("s_branch L_aux2")

a.label("L_att_main")
a("s_barrier")
a(f"""
v_and_b32 v6, 1, v2
v_lshlrev_b32 v6, 9, v6
v_lshl_add_u32 v6, v3, 5, v6
""")
for jj in range(4):
    for k, off in enumerate((0, 16, 1024, 1040)):
        a(f"ds_read_b128 {vr(32+jj*16+k*4)}, v6 offset:{L_QP+jj*128+off}")
a("s_waitcnt lgkmcnt(0)")
for jj in range(4):
    b = 32 + jj*16
    for k in range(8): a(f"v_add_f32 v{b+k}, v{b+k}, v{b+8+k}")
    for k in range(4): a(f"v_cvt_pk_bf16_f32 v{Q+jj*4+k}, v{b+2*k}, v{b+2*k+1}")
if OPT['dbg']:
    pass
for k in range(32): a(f"v_mov_b32 v{O+k}, 0")
a("v_mov_b32 v8, 0xff800000\nv_mov_b32 v9, 0\nv_mov_b32 v10, 0")
uid = [0]
def process(slot, prefetch, wK, wV):
    K = KB[slot]; V = VB[slot]
    uid[0] += 1
    a(f"s_waitcnt vmcnt({wK})")
    for jj in range(4):
        for t in range(2):
            D = vr((S0, S1)[t])
            a(f"v_mfma_f32_16x16x32_bf16 {D}, {vr(K+(t*4+jj)*4)}, {vr(Q+jj*4)}, {'0' if jj == 0 else D}")
    if prefetch: issueK(slot)
    a(f"v_max3_f32 v11, v{S0}, v{S0+1}, v{S0+2}")
    a(f"v_max3_f32 v11, v11, v{S0+3}, v{S1}")
    a(f"v_max3_f32 v11, v11, v{S1+1}, v{S1+2}")
    a(f"v_max3_f32 v11, v11, v{S1+3}, v8")
    xreduce(11, 12, "v_max_f32")
    a(f"v_cmp_gt_f32 vcc, v11, v8")
    a(f"s_cbranch_vccz L_nors{uid[0]}")
    a(f"v_sub_f32 v12, v8, v11\nv_mul_f32 v12, {SC}, v12\nv_exp_f32 v12, v12\nv_mov_b32 v8, v11")
    a(f"v_mul_f32 v10, {SC}, v11\nv_sub_f32 v10, 0, v10")
    a("v_mul_f32 v9, v9, v12")
    for k in range(32): a(f"v_mul_f32 v{O+k}, v{O+k}, v12")
    a.label(f"L_nors{uid[0]}")
    for e in range(8): a(f"v_fma_f32 v{S0+e}, v{S0+e}, {SC}, v10")
    for e in range(8): a(f"v_exp_f32 v{S0+e}, v{S0+e}")
    for jj in range(4): a(f"v_cvt_pk_bf16_f32 v{P+jj}, v{S0+2*jj}, v{S0+2*jj+1}")
    a(f"v_add_f32 v12, v{S0}, v{S0+1}\nv_add_f32 v13, v{S0+2}, v{S0+3}\nv_add_f32 v14, v{S0+4}, v{S0+5}\nv_add_f32 v15, v{S0+6}, v{S0+7}")
    a("v_add_f32 v12, v12, v13\nv_add_f32 v14, v14, v15\nv_add_f32 v9, v9, v12\nv_add_f32 v9, v9, v14")
    a(f"s_waitcnt vmcnt({wV})")
    for i in range(4):
        X = XA if i % 2 == 0 else XB
        for jj in range(4):
            a(f"v_perm_b32 v{X+jj}, v{V+(2*jj+1)*4+i}, v{V+(2*jj)*4+i}, {SEL_LO}")
        for jj in range(4):
            a(f"v_perm_b32 v{X+4+jj}, v{V+(2*jj+1)*4+i}, v{V+(2*jj)*4+i}, {SEL_HI}")
        for hlf in range(2):
            D = vr(O+(2*i+hlf)*4)
            a(f"v_mfma_f32_16x16x32_bf16 {D}, {vr(X+4*hlf)}, {vr(P)}, {D}")
    if prefetch:
        issueV(slot); advance()
a("s_mov_b32 s61, 15")
a.label("L_att_loop")
process(0, True, 24, 24); process(1, True, 24, 24)
a("s_sub_u32 s61, s61, 1\ns_cmp_lg_u32 s61, 0\ns_cbranch_scc1 L_att_loop")
process(0, False, 24, 16); process(1, False, 8, 0)
xreduce(9, 12, "v_add_f32")
a(f"""
s_lshl_b32 s8, s3, 10
v_and_b32 v6, 1, v2
v_lshlrev_b32 v6, 9, v6
v_lshl_add_u32 v6, v3, 7, v6
v_add_u32 v6, s8, v6
s_lshl_b32 s8, s3, 4
v_lshlrev_b32 v7, 3, v2
v_add_u32 v7, s8, v7
s_mov_b32 exec_lo, 0x00030003
s_mov_b32 exec_hi, 0x00030003
v_add_u32 v6, {L_AO}, v6
""")
for r in range(4):
    for e in range(0, 8, 2):
        a(f"ds_write2_b32 v6, v{O+4*e+r}, v{O+4*(e+1)+r} offset0:{r*8+e} offset1:{r*8+e+1}")
a(f"s_mov_b64 exec, 3\nds_write_b64 v7, v[8:9] offset:{L_AML}")
a("s_waitcnt lgkmcnt(0)\ns_barrier\ns_endpgm")

a.label("L_aux2")
vm = VM()
a("s_cmp_lg_u32 s3, 0\ns_cbranch_scc1 L_noreset")
a(f"""
v_mov_b32 v24, -1
v_mov_b32 v25, -1
v_mov_b32 v26, -1
v_mov_b32 v27, -1
s_lshl_b32 s8, s7, 13
s_lshl_b32 s9, s6, 10
s_add_u32 s8, s8, s9
v_lshlrev_b32 v4, 4, v0
buffer_store_dwordx4 v[24:27], v4, s[52:55], s8 offen sc0 sc1
s_mul_i32 s8, s5, {8*16*288}
s_mul_i32 s9, s6, {16*288}
s_add_u32 s8, s8, s9
s_mul_i32 s9, s4, 288
s_add_u32 s8, s8, s9
s_add_u32 s8, s8, {W_Y}
s_mov_b64 exec, 0x3ffff
buffer_store_dwordx4 v[24:27], v4, s[52:55], s8 offen sc0 sc1
s_lshl_b32 s8, s7, 7
s_lshl_b32 s9, s6, 3
s_add_u32 s8, s8, s9
s_add_u32 s8, s8, {W_ML}
v_lshlrev_b32 v4, 6, v0
s_mov_b64 exec, 3
buffer_store_dwordx2 v[24:25], v4, s[52:55], s8 offen sc0 sc1
s_mov_b64 exec, 1
v_mov_b32 v4, 0
v_mov_b32 v5, 1
s_waitcnt vmcnt(0)
global_atomic_add v4, v5, s[38:39] sc1
s_mov_b64 exec, -1
""")
a.label("L_noreset")
a(f"s_cmp_lg_u32 s3, 3\ns_cbranch_scc1 L_nomlp\ns_cmp_ge_u32 s2, {NMLP}\ns_cbranch_scc1 L_nomlp")
vm = VM()
a(f"""
v_lshlrev_b32 v4, 3, v0
v_add_u32 v5, 0x200, v4
v_add_u32 v6, 0x400, v4
v_cmp_gt_u32 vcc, 16, v0
v_mov_b32 v7, 0x40000000
v_cndmask_b32 v6, v7, v6, vcc
s_xor_b32 s15, s5, 1
""")
issue_x(vm, 's15')
a(f"""
s_lshl_b32 s10, s2, 8
s_mov_b32 s48, s28
s_mov_b32 s49, s29
s_mov_b32 s50, {576*9216}
s_mov_b32 s51, 0x20000
s_mov_b32 s64, s30
s_mov_b32 s65, s31
s_mov_b32 s66, 9216
s_mov_b32 s67, 0x20000
""")
set_voffs(9216, 's10')
a(f"v_lshl_add_u32 v4, v2, 4, s10\nbuffer_load_dwordx4 v[44:47], v4, s[64:67], 0 offen"); vm.issue('b1')
a("s_mov_b32 s14, 0")
def w1_issue(t):
    issueW(vm, ('w1', t), RING5[t % 5], 48, 's14', NT)
    a(f"s_add_u32 s14, s14, {32*9216}")
for t in range(5): w1_issue(t)
a(f"""
s_mul_i32 s12, s15, 1536
s_add_u32 s12, s12, {L_XN + 3*3072}
v_lshl_add_u32 v7, v0, 3, s12
""")
layernorm(vm, 's15', 7)
a(f"""
v_and_b32 v1, 1, v2
v_mul_u32_u24 v1, 1536, v1
v_lshl_add_u32 v1, v3, 4, v1
v_add_u32 v1, {L_XN + 3*3072}, v1
s_waitcnt lgkmcnt(0)
""")
for t in range(18):
    a(f"ds_read_b128 {vr(AOP[t%2])}, v1 offset:{t*64}")
    vm.wait(('w1', t))
    a("s_waitcnt lgkmcnt(0)")
    gemv_tile(RING5[t % 5], AOP[t % 2], t == 0)
    if t + 5 < 18: w1_issue(t + 5)
a(f"""
s_mul_i32 s10, s2, {128*1152}
s_mov_b32 s48, s32
s_mov_b32 s49, s33
s_mov_b32 s50, {4608*1152}
s_mov_b32 s51, 0x20000
""")
set_voffs(1152, 's10')
w2tiles = [(ct, rt) for ct in range(5) for rt in range(4)]
def w2_issue(k):
    ct, rt = w2tiles[k]
    a(f"s_mov_b32 s14, {rt*32*1152 + ct*256}")
    if ct == 4: a("s_mov_b32 exec_lo, 0x00ff00ff\ns_mov_b32 exec_hi, 0x00ff00ff")
    issueW(vm, ('w2', k), RING5[k % 5], 48, 's14', NT)
    if ct == 4: a("s_mov_b64 exec, -1")
for k in range(5): w2_issue(k)
for k in range(4):
    a(f"v_lshlrev_b32 v{24+2*k}, 16, v{44+k}\nv_and_b32 v{25+2*k}, 0xffff0000, v{44+k}")
for b in range(2):
    for k in range(4):
        e = 2*k
        a(f"v_cvt_pk_bf16_f32 v32, v{O+4*e+b}, v{O+4*(e+1)+b}")
        a("v_and_b32 v33, 0xffff0000, v32\nv_lshlrev_b32 v32, 16, v32")
        a(f"v_add_f32 v32, v32, v{24+e}\nv_add_f32 v33, v33, v{25+e}")
        a("v_cvt_pk_bf16_f32 v32, v32, v33")
        a("v_and_b32 v33, 0xffff0000, v32\nv_lshlrev_b32 v32, 16, v32")
        a("v_max_f32 v32, 0, v32\nv_max_f32 v33, 0, v33")
        a("v_mul_f32 v32, v32, v32\nv_mul_f32 v33, v33, v33")
        a(f"v_cvt_pk_bf16_f32 v{36+k}, v32, v33")
    a(f"v_lshlrev_b32 v4, 4, v2\nds_write_b128 v4, v[36:39] offset:{L_H2 + b*256}")
a(f"""
v_and_b32 v1, 1, v2
v_lshlrev_b32 v1, 8, v1
v_lshl_add_u32 v1, v3, 4, v1
v_add_u32 v1, {L_H2}, v1
s_mul_i32 s15, s2, 4608
s_add_u32 s15, s15, {W_MLP}
v_lshlrev_b32 v4, 5, v2
s_waitcnt lgkmcnt(0)
""")
for k, (ct, rt) in enumerate(w2tiles):
    a(f"ds_read_b128 {vr(AOP[k%2])}, v1 offset:{rt*64}")
    vm.wait(('w2', k))
    a("s_waitcnt lgkmcnt(0)")
    gemv_tile(RING5[k % 5], AOP[k % 2], rt == 0)
    if k + 5 < 20: w2_issue(k + 5)
    if rt == 3:
        for b in range(2):
            for e in range(8): a(f"v_mov_b32 v{24+b*8+e}, v{O+4*e+b}")
        a(f"s_mov_b64 exec, {'0xffff' if ct < 4 else '0xff'}")
        for b in range(2):
            for hlf in range(2):
                a(f"buffer_store_dwordx4 {vr(24+b*8+hlf*4)}, v4, s[52:55], s15 offen offset:{b*2304 + ct*512 + hlf*16 - (0 if b*2304 + ct*512 + hlf*16 < 4096 else 0)} sc0 sc1" if b*2304 + ct*512 + hlf*16 < 4096 else
                  f"s_add_u32 s13, s15, {b*2304 + ct*512}\nbuffer_store_dwordx4 {vr(24+b*8+hlf*4)}, v4, s[52:55], s13 offen offset:{hlf*16} sc0 sc1")
                vm.issue('st')
        a("s_mov_b64 exec, -1")
vm.wait_all()
a(f"""
s_mov_b64 exec, 1
v_mov_b32 v4, 0
v_mov_b32 v5, 1
global_atomic_add v4, v5, s[38:39] offset:128 sc1
s_mov_b64 exec, -1
""")
a.label("L_nomlp")
vm = VM()
a(f"""
s_lshl_b32 s10, s4, 8
s_lshl_b32 s11, s3, 6
s_add_u32 s10, s10, s11
s_mul_i32 s10, s10, 1152
s_mul_i32 s11, s6, 144
s_add_u32 s10, s10, s11
s_mov_b32 s48, s24
s_mov_b32 s49, s25
s_mov_b32 s50, {4096*1152}
s_mov_b32 s51, 0x20000
""")
set_voffs(1152, 's10')
a("s_mov_b32 exec_lo, 0x01ff01ff\ns_mov_b32 exec_hi, 0x01ff01ff")
a("s_mov_b32 s14, 0"); issueW(vm, 'wo0', 96, 48, 's14')
a(f"s_mov_b32 s14, {32*1152}"); issueW(vm, 'wo1', 128, 48, 's14')
a("s_mov_b64 exec, -1")
WX = 192
for rt in range(2):
    vm.wait(f'wo{rt}')
    base = 96 + rt*32
    for i in range(4):
        for hlf, sel in enumerate((SEL_LO, SEL_HI)):
            for jj in range(4):
                a(f"v_perm_b32 v{WX + rt*32 + (2*i+hlf)*4 + jj}, v{base+(2*jj+1)*4+i}, v{base+(2*jj)*4+i}, {sel}")
a("s_cmp_lg_u32 s3, 1\ns_cbranch_scc1 L_nobase\ns_lshl_b32 s8, s6, 1\ns_cmp_lg_u32 s8, s4\ns_cbranch_scc1 L_nobase")
a("s_mov_b32 s12, 0x10000\nv_mov_b32 v4, 0")
a.label("L_mlp_poll")
a(f"""
global_load_dword v5, v4, s[38:39] offset:128 sc1
s_waitcnt vmcnt(0)
v_readfirstlane_b32 s8, v5
s_cmp_ge_u32 s8, {NMLP}
s_cbranch_scc1 L_mlp_ok
s_sleep 8
s_sub_u32 s12, s12, 1
s_cmp_lg_u32 s12, 0
s_cbranch_scc1 L_mlp_poll
""")
a.label("L_mlp_ok")
a(f"""
s_mov_b32 exec_lo, -1
s_mov_b32 exec_hi, 0xf
s_mul_i32 s8, s6, 288
s_mul_i32 s9, s5, 2304
s_add_u32 s8, s8, s9
s_add_u32 s8, s8, {W_MLP}
v_lshlrev_b32 v4, 3, v0
""")
for u in range(NMLP):
    a(f"buffer_load_dwordx2 v[{96+2*u}:{97+2*u}], v4, s[52:55], s8 offen sc0 sc1")
    if u < NMLP-1: a("s_add_u32 s8, s8, 4608")
a(f"""
s_mov_b32 s64, s34
s_mov_b32 s65, s35
s_mov_b32 s66, 1152
s_mov_b32 s67, 0x20000
s_mul_i32 s8, s6, 144
v_lshlrev_b32 v5, 2, v0
buffer_load_dword v16, v5, s[64:67], s8 offen
s_mul_i32 s9, s5, 1152
s_add_u32 s8, s8, s9
buffer_load_dword v17, v5, s[44:47], s8 offen
s_waitcnt vmcnt(0)
""")
for u in range(1, NMLP):
    a(f"v_add_f32 v96, v96, v{96+2*u}\nv_add_f32 v97, v97, v{97+2*u}")
a("""
v_cvt_pk_bf16_f32 v18, v96, v97
v_and_b32 v19, 0xffff0000, v18
v_lshlrev_b32 v18, 16, v18
v_and_b32 v21, 0xffff0000, v16
v_lshlrev_b32 v20, 16, v16
v_add_f32 v18, v18, v20
v_add_f32 v19, v19, v21
v_cvt_pk_bf16_f32 v18, v18, v19
v_and_b32 v19, 0xffff0000, v18
v_lshlrev_b32 v18, 16, v18
v_and_b32 v21, 0xffff0000, v17
v_lshlrev_b32 v20, 16, v17
s_mov_b64 exec, -1
""")
a.label("L_nobase")
a("s_cmp_lg_u32 s3, 0\ns_cbranch_scc1 L_armed\ns_mov_b32 s12, 0x10000\nv_mov_b32 v4, 0")
a.label("L_arm_poll")
a(f"""
global_load_dword v5, v4, s[38:39] sc1
s_waitcnt vmcnt(0)
v_readfirstlane_b32 s8, v5
s_cmp_ge_u32 s8, 256
s_cbranch_scc1 L_armed
s_sleep 8
s_sub_u32 s12, s12, 1
s_cmp_lg_u32 s12, 0
s_cbranch_scc1 L_arm_poll
""")
a.label("L_armed")
a(f"""
s_lshl_b32 s8, s7, 13
s_add_u32 s9, s8, 4096
s_lshl_b32 s10, s3, 8
v_lshl_add_u32 v4, v0, 2, s10
s_lshl_b32 s10, s7, 7
s_lshr_b32 s11, s3, 1
s_lshl_b32 s11, s11, 6
s_add_u32 s10, s10, s11
s_add_u32 s10, s10, {W_ML}
v_mov_b32 v5, 0
s_barrier
""")
a("s_cmp_lg_u32 s3, 0\ns_cbranch_scc1 L_l1")
a(f"""
v_lshlrev_b32 v6, 4, v0
v_lshrrev_b32 v7, 5, v0
v_lshlrev_b32 v7, 3, v7
""")
for w in range(4):
    a(f"ds_read_b128 {vr(96+4*w)}, v6 offset:{L_AO + w*1024}")
    a(f"ds_read_b64 v[{112+2*w}:{113+2*w}], v7 offset:{L_AML + w*16}")
a(f"""
s_waitcnt lgkmcnt(0)
v_max3_f32 v120, v112, v114, v116
v_max_f32 v120, v120, v118
""")
for w in range(4):
    a(f"v_sub_f32 v{122+w}, v{112+2*w}, v120\nv_mul_f32 v{122+w}, {SC}, v{122+w}\nv_exp_f32 v{122+w}, v{122+w}")
a("v_mul_f32 v121, v122, v113")
for w in range(1, 4): a(f"v_fmac_f32 v121, v{122+w}, v{113+2*w}")
for k in range(4):
    a(f"v_mul_f32 v{128+k}, v122, v{96+k}")
    for w in range(1, 4): a(f"v_fmac_f32 v{128+k}, v{122+w}, v{96+4*w+k}")
for k in range(4): a(f"v_min_u32 v{128+k}, -2, v{128+k}")
a(f"""
v_min_u32 v120, -2, v120
v_min_u32 v121, -2, v121
s_lshl_b32 s12, s6, 10
s_add_u32 s12, s12, s8
buffer_store_dwordx4 v[128:131], v6, s[52:55], s12 offen sc0 sc1
s_lshl_b32 s12, s7, 7
s_lshl_b32 s13, s6, 3
s_add_u32 s12, s12, s13
s_add_u32 s12, s12, {W_ML}
v_lshlrev_b32 v7, 1, v0
s_mov_b32 exec_lo, 1
s_mov_b32 exec_hi, 1
buffer_store_dwordx2 v[120:121], v7, s[52:55], s12 offen sc0 sc1
s_mov_b64 exec, -1
""")
a.label("L_l1")
a("s_mov_b32 s12, 0x10000")
a.label("L_l1_poll")
for s_ in range(8):
    a(f"buffer_load_dword v{96+s_}, v4, s[52:55], {'s8' if s_ < 4 else 's9'} offen offset:{(s_%4)*1024} sc0 sc1")
for k in range(4):
    a(f"buffer_load_dwordx4 {vr(104+4*k)}, v5, s[52:55], s10 offen offset:{k*16} sc0 sc1")
a("s_waitcnt vmcnt(0)")
a("v_max3_u32 v120, v96, v97, v98")
for k in range(99, 119, 2): a(f"v_max3_u32 v120, v120, v{k}, v{k+1}")
a("v_max_u32 v120, v120, v119")
a(f"""
v_cmp_eq_u32 vcc, -1, v120
s_cbranch_vccz L_l1_ok
s_sleep 2
s_sub_u32 s12, s12, 1
s_cmp_lg_u32 s12, 0
s_cbranch_scc1 L_l1_poll
""")
a.label("L_l1_ok")
a("v_max3_f32 v120, v104, v106, v108\nv_max3_f32 v120, v120, v110, v112\nv_max3_f32 v120, v120, v114, v116\nv_max_f32 v120, v120, v118")
for s_ in range(8):
    a(f"v_sub_f32 v{122+s_}, v{104+2*s_}, v120\nv_mul_f32 v{122+s_}, {SC}, v{122+s_}\nv_exp_f32 v{122+s_}, v{122+s_}")
a("v_mul_f32 v121, v122, v105\nv_mul_f32 v130, v122, v96")
for s_ in range(1, 8):
    a(f"v_fmac_f32 v121, v{122+s_}, v{105+2*s_}\nv_fmac_f32 v130, v{122+s_}, v{96+s_}")
a(f"""
v_rcp_f32 v121, v121
v_mul_f32 v130, v130, v121
v_cvt_pk_bf16_f32 v130, v130, v130
s_lshl_b32 s12, s3, 7
v_lshl_add_u32 v6, v0, 1, s12
ds_write_b16 v6, v130 offset:{L_OB}
v_lshl_add_u32 v7, v3, 4, s12
s_waitcnt lgkmcnt(0)
ds_read_b128 v[132:135], v7 offset:{L_OB}
ds_read_b128 v[136:139], v7 offset:{L_OB+64}
s_waitcnt lgkmcnt(0)
""")
for rt in range(2):
    for e in range(8):
        D = vr(O+4*e)
        a(f"v_mfma_f32_16x16x32_bf16 {D}, {vr(132+4*rt)}, {vr(WX+rt*32+e*4)}, {'0' if rt == 0 else D}")
a(f"s_lshl_b32 s12, s3, 9\nv_lshl_add_u32 v6, v2, 5, s12\ns_mov_b64 exec, 0xffff")
for e in range(0, 8, 2):
    a(f"ds_write2_b32 v6, v{O+4*e}, v{O+4*(e+1)} offset0:{e} offset1:{e+1}")
a("s_mov_b64 exec, -1\ns_waitcnt lgkmcnt(0)\ns_barrier")
a("s_cmp_eq_u32 s3, 1\ns_cbranch_scc1 L_final\ns_cmp_lg_u32 s3, 0\ns_cbranch_scc1 L_end")
a(f"""
s_mov_b64 exec, 0x3ffff
v_lshlrev_b32 v6, 4, v0
""")
for w in range(4): a(f"ds_read_b128 {vr(96+4*w)}, v6 offset:{L_QP + w*512}")
a("s_waitcnt lgkmcnt(0)")
for k in range(4):
    a(f"v_add_f32 v{96+k}, v{96+k}, v{100+k}\nv_add_f32 v{104+k}, v{104+k}, v{108+k}\nv_add_f32 v{96+k}, v{96+k}, v{104+k}\nv_min_u32 v{96+k}, -2, v{96+k}")
a(f"""
s_mul_i32 s8, s5, {8*16*288}
s_mul_i32 s9, s6, {16*288}
s_add_u32 s8, s8, s9
s_mul_i32 s9, s4, 288
s_add_u32 s8, s8, s9
s_add_u32 s8, s8, {W_Y}
buffer_store_dwordx4 v[96:99], v6, s[52:55], s8 offen sc0 sc1
s_endpgm
""")
a.label("L_final")
a(f"""
s_lshl_b32 s8, s6, 1
s_cmp_lg_u32 s8, s4
s_cbranch_scc1 L_end
s_mul_i32 s8, s5, {8*16*288}
s_mul_i32 s9, s6, {16*288}
s_add_u32 s8, s8, s9
s_add_u32 s8, s8, {W_Y}
s_add_u32 s9, s8, {8*288}
s_mov_b32 exec_lo, -1
s_mov_b32 exec_hi, 0xf
v_lshlrev_b32 v4, 3, v0
s_mov_b32 s12, 0x10000
""")
a.label("L_fin_poll")
for k in range(16):
    a(f"buffer_load_dwordx2 v[{96+2*k}:{97+2*k}], v4, s[52:55], {'s8' if k < 8 else 's9'} offen offset:{(k%8)*288} sc0 sc1")
a("s_waitcnt vmcnt(0)")
a("v_max3_u32 v130, v96, v97, v98")
for k in range(99, 127, 2): a(f"v_max3_u32 v130, v130, v{k}, v{k+1}")
a("v_max_u32 v130, v130, v127")
a(f"""
v_cmp_eq_u32 vcc, -1, v130
s_cbranch_vccz L_fin_ok
s_sleep 2
s_sub_u32 s12, s12, 1
s_cmp_lg_u32 s12, 0
s_cbranch_scc1 L_fin_poll
""")
a.label("L_fin_ok")
for k in range(1, 16):
    a(f"v_add_f32 v96, v96, v{96+2*k}\nv_add_f32 v97, v97, v{97+2*k}")
a(f"""
v_cvt_pk_bf16_f32 v96, v96, v97
v_and_b32 v97, 0xffff0000, v96
v_lshlrev_b32 v96, 16, v96
v_add_f32 v96, v96, v20
v_add_f32 v97, v97, v21
v_cvt_pk_bf16_f32 v96, v96, v97
v_and_b32 v97, 0xffff0000, v96
v_lshlrev_b32 v96, 16, v96
v_add_f32 v96, v96, v18
v_add_f32 v97, v97, v19
v_cvt_pk_bf16_f32 v96, v96, v97
s_mov_b32 s64, s36
s_mov_b32 s65, s37
s_mov_b32 s66, 2304
s_mov_b32 s67, 0x20000
s_mul_i32 s8, s6, 144
s_mul_i32 s9, s5, 1152
s_add_u32 s8, s8, s9
v_lshlrev_b32 v5, 2, v0
buffer_store_dword v96, v5, s[64:67], s8 offen
""")
a.label("L_end")
a("s_endpgm")

ref = open('cdna_kernels/' + NAME + '.s.ref').read().split('\n')
hdr = [l for l in ref if l.startswith(';') and '@launch' not in l]
out = "\n".join(hdr) + f"\n; @launch grid=(256,1,1) block=(512,1,1) lds={LDS_BYTES}\n"
out += f""".amdgcn_target "amdgcn-amd-amdhsa--gfx950"
.text
.globl {NAME}_kernel
.p2align 8
.type {NAME}_kernel,@function
{NAME}_kernel:
""" + a.text() + f""".section .rodata,"a"
.p2align 6
.amdhsa_kernel {NAME}_kernel
  .amdhsa_next_free_vgpr 256
  .amdhsa_next_free_sgpr 72
  .amdhsa_accum_offset 256
  .amdhsa_group_segment_fixed_size 0
  .amdhsa_kernarg_size 104
  .amdhsa_user_sgpr_count 2
  .amdhsa_user_sgpr_kernarg_segment_ptr 1
  .amdhsa_system_sgpr_workgroup_id_x 1
.end_amdhsa_kernel
"""
open(sys.argv[1], 'w').write(out)
print("lines", len(a.lines), "nops", a.nops)
```

```python
import sys, struct, math
from asmlib import *
NAME = "parallel_sum__gqa_block_cached__dense_activation_squared_relu__decode"
def f32(x): return struct.unpack('<I', struct.pack('<f', x))[0]
CSCALE = f32((128 ** -0.5) * math.log2(math.e))
OPT = dict(nt='nt', dbg=0, prio=3, spin=0x10000, pace=8)
for arg in sys.argv[2:]:
    k, v = arg.split('='); OPT[k] = v if not v.lstrip('-').isdigit() else int(v)
NT = OPT['nt']; DBG = OPT['dbg']; SPIN = OPT['spin']
L_Q = 0x0000
L_FLAG = 0x0200
L_YP = 0x0400
L_AO = 0x0C00
L_AML = 0x1C00
L_OB = 0x1D00
L_RED = 0x2200
L_XN = 0x3200
LDS_BYTES = 0x6200
W_O = 0; W_ML = 0x40000; W_Y = 0x42000; W_H = 0x54000; W_Q = 0x60000
a = Asm()
class VM:
    def __init__(s): s.q = []
    def issue(s, tag): s.q.append(tag)
    def wait(s, tag):
        idx = max(i for i, t in enumerate(s.q) if t == tag)
        n = len(s.q) - 1 - idx
        assert n <= 63
        a(f"s_waitcnt vmcnt({n})"); s.q = s.q[idx+1:]
    def wait_all(s): a("s_waitcnt vmcnt(0)"); s.q = []
def stamp(k):
    if DBG: a(f"s_memrealtime s[{72+2*k}:{73+2*k}]")
def vr(b, n=4): return f"v[{b}:{b+n-1}]"
S0, S1, P, XA, XB, O = 32, 36, 40, 48, 56, 64
Q = 16
KB = [96, 128]; VB = [160, 192]
SEL_LO, SEL_HI, SC = 's59', 's60', 's58'
WS = 's[52:55]'
def xswap16(v, t, op):
    a(f"v_mov_b32 v{t}, v{v}\nv_permlane16_swap_b32 v{v}, v{t}\n{op} v{v}, v{v}, v{t}")
def xswap32(v, t, op):
    a(f"v_mov_b32 v{t}, v{v}\nv_permlane32_swap_b32 v{v}, v{t}\n{op} v{v}, v{v}, v{t}")
def xreduce(v, t, op): xswap16(v, t, op); xswap32(v, t, op)
def rowreduce(v, op):
    for m in ("quad_perm:[1,0,3,2]", "quad_perm:[2,3,0,1]", "row_half_mirror", "row_mirror"):
        a(f"{op}_dpp v{v}, v{v}, v{v} {m} row_mask:0xf bank_mask:0xf")
def perm_mfma(base, fn):
    for i in range(4):
        X = XA if i % 2 == 0 else XB
        for jj in range(4):
            a(f"v_perm_b32 v{X+jj}, v{base+(2*jj+1)*4+i}, v{base+(2*jj)*4+i}, {SEL_LO}")
        for jj in range(4):
            a(f"v_perm_b32 v{X+4+jj}, v{base+(2*jj+1)*4+i}, v{base+(2*jj)*4+i}, {SEL_HI}")
        for hlf in range(2): fn(2*i+hlf, X+4*hlf)
def gemv_tile(base, A, first):
    perm_mfma(base, lambda e, X: a(f"v_mfma_f32_16x16x32_bf16 {vr(O+e*4)}, {vr(A)}, {vr(X)}, {'0' if first else vr(O+e*4)}"))
uid = [0]
def spin(name, body, okcond_branch):
    a(f"s_mov_b32 s12, {SPIN}")
    a.label(f"L_{name}_poll")
    body()
    a(f"{okcond_branch} L_{name}_ok")
    a(f"s_sleep 1\ns_sub_u32 s12, s12, 1\ns_cmp_lg_u32 s12, 0\ns_cbranch_scc1 L_{name}_poll")
    a.label(f"L_{name}_ok")

a(f"""
s_cmp_ge_u32 s2, 256
s_cbranch_scc1 L_end
s_load_dwordx16 s[16:31], s[0:1], 0
s_load_dwordx8 s[32:39], s[0:1], 64
s_load_dwordx2 s[40:41], s[0:1], 96
v_lshrrev_b32 v1, 6, v0
v_and_b32 v0, 63, v0
v_readfirstlane_b32 s3, v1
s_and_b32 s4, s2, 7
s_lshl_b32 s4, s4, 1
s_lshr_b32 s8, s2, 3
s_and_b32 s9, s8, 1
s_add_u32 s4, s4, s9
s_bfe_u32 s5, s8, 0x10001
s_lshr_b32 s6, s8, 2
s_lshl_b32 s7, s5, 4
s_add_u32 s7, s7, s4
v_and_b32 v2, 15, v0
v_lshrrev_b32 v3, 4, v0
{"s_memrealtime s[72:73]" if DBG else ""}
s_mov_b32 {SEL_LO}, 0x05040100
s_mov_b32 {SEL_HI}, 0x07060302
s_mov_b32 {SC}, {CSCALE:#x}
s_lshl_b32 s62, s5, 3
s_add_u32 s62, s62, s6
v_mov_b32 v4, 0
v_mov_b32 v5, {L_FLAG}
s_cmp_ge_u32 s3, 4
s_cbranch_scc1 L_aux
""")
a(f"""
v_lshlrev_b32 v4, 8, v2
v_lshl_add_u32 v4, v3, 4, v4
v_lshlrev_b32 v5, 10, v3
v_lshl_add_u32 v5, v2, 4, v5
s_lshl_b32 s8, s7, 23
s_lshl_b32 s9, s6, 20
s_add_u32 s8, s8, s9
s_lshl_b32 s56, s3, 13
s_add_u32 s57, s56, 4096
s_mov_b32 s46, 0x100000
s_mov_b32 s47, 0x20000
s_mov_b32 s50, 0x100000
s_mov_b32 s51, 0x20000
s_waitcnt lgkmcnt(0)
s_add_u32 s44, s18, s8
s_addc_u32 s45, s19, 0
s_add_u32 s48, s20, s8
s_addc_u32 s49, s21, 0
s_barrier
""")
def issueK(slot):
    for t in range(2):
        for jj in range(4):
            a(f"buffer_load_dwordx4 {vr(KB[slot]+(t*4+jj)*4)}, v4, s[44:47], s{56+t} offen offset:{jj*64} {NT}")
def issueV(slot):
    for t in range(2):
        for r in range(4):
            a(f"buffer_load_dwordx4 {vr(VB[slot]+(t*4+r)*4)}, v5, s[48:51], s{56+t} offen offset:{r*256} {NT}")
def advance():
    a("s_add_u32 s56, s56, 0x8000\ns_add_u32 s57, s57, 0x8000")
def k_load(slot, j):
    t, jj = j >> 2, j & 3
    a(f"buffer_load_dwordx4 {vr(KB[slot]+(t*4+jj)*4)}, v4, s[44:47], s{56+t} offen offset:{jj*64} {NT}")
def v_load(slot, j):
    t, r = j >> 2, j & 3
    a(f"buffer_load_dwordx4 {vr(VB[slot]+(t*4+r)*4)}, v5, s[48:51], s{56+t} offen offset:{r*256} {NT}")
PACE = OPT['pace']
cnt = 0
for slot in range(2):
    for fn in (k_load, v_load):
        for j in range(8):
            if cnt >= PACE and cnt % 4 == 0: a(f"s_waitcnt vmcnt({PACE-4})")
            fn(slot, j); cnt += 1
    advance()
a("s_branch L_att_main")

a.label("L_aux")
a(f"s_setprio {OPT['prio']}")
a("s_sub_u32 s3, s3, 4")
a("s_cmp_lg_u32 s3, 0\ns_cbranch_scc1 L_aux_unit")
a(f"""
ds_write_b32 v5, v4
v_mov_b32 v24, -1
v_mov_b32 v25, -1
v_mov_b32 v26, -1
v_mov_b32 v27, -1
""")
a(f"""
s_and_b32 s8, s62, 3
s_lshl_b32 s8, s8, 8
s_lshr_b32 s9, s62, 2
s_lshl_b32 s9, s9, 10
s_add_u32 s8, s8, s9
s_lshl_b32 s9, s4, 13
s_add_u32 s8, s8, s9
s_add_u32 s8, s8, {W_Q}
s_lshl_b32 s9, s62, 6
s_mul_i32 s10, s4, 2304
s_add_u32 s10, s10, s9
s_add_u32 s10, s10, {W_H}
s_add_u32 s11, s10, 1024
s_mul_i32 s13, s5, {8*16*288}
s_mul_i32 s14, s6, {16*288}
s_add_u32 s13, s13, s14
s_mul_i32 s14, s4, 288
s_add_u32 s13, s13, s14
s_add_u32 s13, s13, {W_Y}
v_lshlrev_b32 v8, 12, v3
v_lshl_add_u32 v8, v2, 4, v8
v_add_u32 v8, s8, v8
v_and_b32 v6, 3, v0
v_lshlrev_b32 v6, 4, v6
v_bfe_u32 v7, v0, 2, 1
v_mul_u32_u24 v9, 1152, v7
v_add_u32 v9, v9, v6
v_add_u32 v10, s11, v9
v_add_u32 v9, s10, v9
v_cmp_gt_u32 vcc, 32, v0
v_cndmask_b32 v9, v9, v8, vcc
v_cmp_gt_u32 vcc, 40, v0
v_cndmask_b32 v10, v10, v9, vcc
v_lshl_add_u32 v11, v0, 4, s13
s_lshl_b32 s8, s7, 13
s_lshl_b32 s9, s6, 10
s_add_u32 s8, s8, s9
v_lshlrev_b32 v12, 4, v0
s_lshl_b32 s9, s7, 7
s_lshl_b32 s10, s6, 3
s_add_u32 s9, s9, s10
s_add_u32 s9, s9, {W_ML}
v_lshlrev_b32 v13, 6, v0
s_mov_b32 s14, 0xff
s_cmp_lt_u32 s62, 2
s_cselect_b32 s14, 0xffff, s14
s_mov_b32 s54, 0x40000000
s_mov_b32 s55, 0x20000
s_waitcnt lgkmcnt(0)
s_mov_b32 s52, s40
s_mov_b32 s53, s41
s_mov_b32 exec_hi, s14
buffer_store_dwordx4 v[24:27], v10, {WS}, 0 offen sc0 sc1
s_mov_b64 exec, -1
buffer_store_dwordx4 v[24:27], v12, {WS}, s8 offen sc0 sc1
s_mov_b64 exec, 0x3ffff
buffer_store_dwordx4 v[24:27], v11, {WS}, 0 offen sc0 sc1
s_mov_b64 exec, 3
buffer_store_dwordx2 v[24:25], v13, {WS}, s9 offen sc0 sc1
s_barrier
s_mov_b64 exec, 1
s_lshl_b32 s11, s4, 4
v_mov_b32 v14, s11
v_mov_b32 v15, 1
s_waitcnt vmcnt(0)
global_atomic_add v14, v15, s[38:39] sc1
ds_write_b32 v5, v15
""")
stamp(1)
def body():
    a("global_load_dword v16, v14, s[38:39] sc1\ns_waitcnt vmcnt(0)\nv_readfirstlane_b32 s8, v16\ns_cmp_ge_u32 s8, 16")
spin("fam", body, "s_cbranch_scc1")
stamp(2)
a(f"""
s_mov_b64 exec, -1
s_lshl_b32 s8, s4, 13
s_lshl_b32 s9, s5, 12
s_add_u32 s8, s8, s9
s_add_u32 s8, s8, {W_Q}
""")
def body():
    for rg in range(4):
        a(f"buffer_load_dwordx4 {vr(16+4*rg)}, v12, {WS}, s8 offen offset:{rg*1024} sc0 sc1")
    a("s_waitcnt vmcnt(0)")
    a("v_max3_u32 v32, v16, v17, v18")
    for k in range(19, 31, 2): a(f"v_max3_u32 v32, v32, v{k}, v{k+1}")
    a("v_max_u32 v32, v32, v31\nv_cmp_eq_u32 vcc, -1, v32")
spin("q", body, "s_cbranch_vccz")
for k in range(4):
    a(f"v_add_f32 v{16+k}, v{16+k}, v{20+k}\nv_add_f32 v{24+k}, v{24+k}, v{28+k}\nv_add_f32 v{16+k}, v{16+k}, v{24+k}")
a(f"""
v_cvt_pk_bf16_f32 v16, v16, v17
v_cvt_pk_bf16_f32 v17, v18, v19
v_lshlrev_b32 v20, 3, v0
ds_write_b64 v20, v[16:17] offset:{L_Q}
s_waitcnt lgkmcnt(0)
""")
stamp(3)
a("s_barrier\ns_branch L_aux2")

def layernorm(vm):
    vm.wait('x')
    for k in range(10):
        a(f"v_lshlrev_b32 v{26+2*k}, 16, v{16+k}\nv_and_b32 v{27+2*k}, 0xffff0000, v{16+k}")
    a("v_add_f32 v192, v26, v27")
    for k in range(2, 20): a(f"v_add_f32 v192, v192, v{26+k}")
    rowreduce(192, "v_add_f32"); xswap16(192, 193, "v_add_f32")
    a(f"v_mul_f32 v192, {f32(1.0/576):#x}, v192")
    a("v_and_b32 v193, 16, v0\nv_cmp_eq_u32 vcc, 0, v193\nv_mov_b32 v194, 0")
    for k in range(20):
        a(f"v_sub_f32 v195, v{26+k}, v192")
        if k >= 16: a("v_cndmask_b32 v195, 0, v195, vcc")
        a("v_fmac_f32 v194, v195, v195")
    rowreduce(194, "v_add_f32"); xswap16(194, 193, "v_add_f32")
    a(f"""
v_mul_f32 v194, {f32(1.0/576):#x}, v194
v_cvt_pk_bf16_f32 v193, v192, v194
v_lshlrev_b32 v192, 16, v193
v_and_b32 v194, 0xffff0000, v193
v_add_f32 v194, {f32(1e-5):#x}, v194
v_cvt_pk_bf16_f32 v194, v194, v194
v_lshlrev_b32 v194, 16, v194
v_sqrt_f32 v194, v194
v_cvt_pk_bf16_f32 v194, v194, v194
v_lshlrev_b32 v194, 16, v194
v_rcp_f32 v194, v194
""")
    for k in range(10):
        a(f"v_sub_f32 v196, v{26+2*k}, v192\nv_sub_f32 v197, v{27+2*k}, v192")
        a("v_cvt_pk_bf16_f32 v196, v196, v197")
        a("v_and_b32 v197, 0xffff0000, v196\nv_lshlrev_b32 v196, 16, v196")
        a("v_mul_f32 v196, v196, v194\nv_mul_f32 v197, v197, v194")
        a(f"v_cvt_pk_bf16_f32 v{16+k}, v196, v197")
    a(f"""
s_mul_i32 s13, s3, 3072
s_add_u32 s13, s13, {L_XN}
v_lshrrev_b32 v198, 5, v0
v_mul_u32_u24 v198, 1536, v198
v_and_b32 v199, 31, v0
v_lshl_add_u32 v198, v199, 3, v198
v_add_u32 v198, s13, v198
""")
    for i in range(5): a(f"ds_write_b64 v198, v[{16+2*i}:{17+2*i}] offset:{i*256}")
def x_addr():
    a(f"""
v_lshrrev_b32 v6, 5, v0
v_mul_u32_u24 v6, 1152, v6
v_and_b32 v7, 31, v0
v_lshl_add_u32 v6, v7, 3, v6
v_add_u32 v7, 0x400, v6
v_and_b32 v8, 16, v0
v_cmp_eq_u32 vcc, 0, v8
v_mov_b32 v8, 0x40000000
v_cndmask_b32 v7, v8, v7, vcc
""")
def x_issue(vm):
    for i in range(4):
        a(f"buffer_load_dwordx2 v[{16+2*i}:{17+2*i}], v6, s[44:47], 0 offen offset:{i*256}"); vm.issue('x')
    a("buffer_load_dwordx2 v[24:25], v7, s[44:47], 0 offen"); vm.issue('x')
RING = [96, 128, 160]
def wait_reset_flag(name):
    def body():
        a(f"v_mov_b32 v202, {L_FLAG}\nds_read_b32 v203, v202\ns_waitcnt lgkmcnt(0)\nv_readfirstlane_b32 s8, v203\ns_cmp_eq_u32 s8, 1")
    spin(name, body, "s_cbranch_scc1")

a.label("L_aux_unit")
a(f"""
s_mov_b32 s46, 2304
s_mov_b32 s47, 0x20000
s_mov_b32 s51, 0x20000
s_mov_b32 s54, 0x40000000
s_mov_b32 s55, 0x20000
s_cmp_eq_u32 s3, 1
s_cbranch_scc1 L_qunit
s_waitcnt lgkmcnt(0)
s_mov_b32 s52, s40
s_mov_b32 s53, s41
s_barrier
s_barrier
s_branch L_aux2
""")
a.label("L_qunit")
x_addr()
a(f"""
s_lshr_b32 s9, s62, 2
s_mul_i32 s9, s9, {144*8192}
s_lshl_b32 s8, s4, 9
s_add_u32 s8, s8, s9
s_and_b32 s9, s62, 3
s_lshl_b32 s9, s9, 7
s_add_u32 s8, s8, s9
v_lshrrev_b32 v8, 3, v2
v_mul_u32_u24 v8, 72, v8
v_lshl_add_u32 v8, v3, 3, v8
v_lshlrev_b32 v8, 13, v8
v_and_b32 v9, 7, v2
v_lshl_add_u32 v8, v9, 4, v8
v_add_u32 v8, s8, v8
v_cmp_gt_u32 vcc, 16, v0
v_mov_b32 v9, 0x40000000
v_cndmask_b32 v204, v9, v8, vcc
s_mov_b32 s50, {576*8192}
s_waitcnt lgkmcnt(0)
s_mov_b32 s44, s16
s_mov_b32 s45, s17
s_mov_b32 s48, s22
s_mov_b32 s49, s23
s_mov_b32 s52, s40
s_mov_b32 s53, s41
s_barrier
""")
vm = VM()
x_issue(vm)
for j in range(1, 8): a(f"v_add_u32 v{8+j}, 8192, v{8+j-1}")
for st in range(3):
    if st == 2:
        a("v_mov_b32 v8, v204")
        for j in range(1, 8): a(f"v_add_u32 v{8+j}, 8192, v{8+j-1}")
    a(f"s_mov_b32 s10, {st*32*8192}")
    for j in range(8):
        a(f"buffer_load_dwordx4 {vr(RING[st]+j*4)}, v{8+j}, s[48:51], s10 offen"); vm.issue(('w', st))
stamp(1)
layernorm(vm)
a(f"""
v_and_b32 v199, 1, v2
v_mul_u32_u24 v199, 1536, v199
v_bfe_u32 v200, v2, 1, 1
v_mul_u32_u24 v200, 144, v200
v_add_u32 v199, v199, v200
v_lshl_add_u32 v199, v3, 4, v199
s_lshr_b32 s9, s62, 2
s_mul_i32 s9, s9, 288
s_add_u32 s9, s9, s13
v_add_u32 v199, s9, v199
s_waitcnt lgkmcnt(0)
""")
for st in range(3): a(f"ds_read_b128 {vr(16+4*st)}, v199 offset:{st*64}")
stamp(2)
a("s_waitcnt lgkmcnt(0)")
for st in range(3):
    vm.wait(('w', st))
    gemv_tile(RING[st], 16+4*st, st == 0)
a("v_and_b32 v200, 8, v2\nv_cmp_ne_u32 vcc, 0, v200")
for b in range(2):
    for e in range(8):
        a(f"v_cndmask_b32 v{16+b*8+e}, v{O+4*e+b}, v{O+4*e+2+b}, vcc")
for k in range(16):
    a(f"v_add_f32_dpp v{16+k}, v{16+k}, v{16+k} row_ror:8 row_mask:0xf bank_mask:0xf")
for k in range(16): a(f"v_min_u32 v{16+k}, -2, v{16+k}")
wait_reset_flag("rst1")
a(f"""
s_and_b32 s8, s62, 3
s_lshl_b32 s8, s8, 8
s_lshr_b32 s9, s62, 2
s_lshl_b32 s9, s9, 10
s_add_u32 s8, s8, s9
s_lshl_b32 s9, s4, 13
s_add_u32 s8, s8, s9
s_add_u32 s8, s8, {W_Q}
s_add_u32 s9, s8, 4096
v_lshlrev_b32 v200, 5, v2
s_mov_b64 exec, 0xff
buffer_store_dwordx4 v[16:19], v200, {WS}, s8 offen sc0 sc1
buffer_store_dwordx4 v[20:23], v200, {WS}, s8 offen offset:16 sc0 sc1
buffer_store_dwordx4 v[24:27], v200, {WS}, s9 offen sc0 sc1
buffer_store_dwordx4 v[28:31], v200, {WS}, s9 offen offset:16 sc0 sc1
s_mov_b64 exec, -1
""")
stamp(3)
a("s_barrier\ns_branch L_aux2")

a.label("L_att_main")
stamp(1)
a("s_barrier")
stamp(2)
a(f"""
v_and_b32 v6, 1, v2
v_lshlrev_b32 v6, 8, v6
v_lshl_add_u32 v6, v3, 4, v6
""")
for jj in range(4): a(f"ds_read_b128 {vr(Q+jj*4)}, v6 offset:{L_Q+jj*64}")
for k in range(32): a(f"v_mov_b32 v{O+k}, 0")
a("v_mov_b32 v8, 0xff800000\nv_mov_b32 v9, 0\nv_mov_b32 v10, 0\ns_waitcnt lgkmcnt(0)")
def process(slot, prefetch, wK, wV):
    K = KB[slot]; V = VB[slot]
    uid[0] += 1
    a(f"s_waitcnt vmcnt({wK})")
    for jj in range(4):
        for t in range(2):
            D = vr((S0, S1)[t])
            a(f"v_mfma_f32_16x16x32_bf16 {D}, {vr(K+(t*4+jj)*4)}, {vr(Q+jj*4)}, {'0' if jj == 0 else D}")
    if prefetch: issueK(slot)
    a(f"v_max3_f32 v11, v{S0}, v{S0+1}, v{S0+2}")
    a(f"v_max3_f32 v11, v11, v{S0+3}, v{S1}")
    a(f"v_max3_f32 v11, v11, v{S1+1}, v{S1+2}")
    a(f"v_max3_f32 v11, v11, v{S1+3}, v8")
    xreduce(11, 12, "v_max_f32")
    a(f"v_cmp_gt_f32 vcc, v11, v8")
    a(f"s_cbranch_vccz L_nors{uid[0]}")
    a(f"v_sub_f32 v12, v8, v11\nv_mul_f32 v12, {SC}, v12\nv_exp_f32 v12, v12\nv_mov_b32 v8, v11")
    a(f"v_mul_f32 v10, {SC}, v11\nv_sub_f32 v10, 0, v10")
    a("v_mul_f32 v9, v9, v12")
    for k in range(32): a(f"v_mul_f32 v{O+k}, v{O+k}, v12")
    a.label(f"L_nors{uid[0]}")
    for e in range(8): a(f"v_fma_f32 v{S0+e}, v{S0+e}, {SC}, v10")
    for e in range(8): a(f"v_exp_f32 v{S0+e}, v{S0+e}")
    for jj in range(4): a(f"v_cvt_pk_bf16_f32 v{P+jj}, v{S0+2*jj}, v{S0+2*jj+1}")
    a(f"v_add_f32 v12, v{S0}, v{S0+1}\nv_add_f32 v13, v{S0+2}, v{S0+3}\nv_add_f32 v14, v{S0+4}, v{S0+5}\nv_add_f32 v15, v{S0+6}, v{S0+7}")
    a("v_add_f32 v12, v12, v13\nv_add_f32 v14, v14, v15\nv_add_f32 v9, v9, v12\nv_add_f32 v9, v9, v14")
    a(f"s_waitcnt vmcnt({wV})")
    perm_mfma(V, lambda e, X: a(f"v_mfma_f32_16x16x32_bf16 {vr(O+e*4)}, {vr(X)}, {vr(P)}, {vr(O+e*4)}"))
    if prefetch:
        issueV(slot); advance()
stamp(3)
a("s_mov_b32 s61, 15")
a.label("L_att_loop")
process(0, True, 24, 24); process(1, True, 24, 24)
a("s_sub_u32 s61, s61, 1\ns_cmp_lg_u32 s61, 0\ns_cbranch_scc1 L_att_loop")
process(0, False, 24, 16); process(1, False, 8, 0)
stamp(4)
xreduce(9, 12, "v_add_f32")
a(f"""
s_lshl_b32 s8, s3, 10
v_and_b32 v6, 1, v2
v_lshlrev_b32 v6, 9, v6
v_lshl_add_u32 v6, v3, 7, v6
v_add_u32 v6, s8, v6
s_lshl_b32 s8, s3, 4
v_lshlrev_b32 v7, 3, v2
v_add_u32 v7, s8, v7
v_add_u32 v6, {L_AO}, v6
s_mov_b32 exec_lo, 0x00030003
s_mov_b32 exec_hi, 0x00030003
""")
for r in range(4):
    for e in range(0, 8, 2):
        a(f"ds_write2_b32 v6, v{O+4*e+r}, v{O+4*(e+1)+r} offset0:{r*8+e} offset1:{r*8+e+1}")
a(f"s_mov_b64 exec, 3\nds_write_b64 v7, v[8:9] offset:{L_AML}")
a("s_waitcnt lgkmcnt(0)\ns_barrier")
if DBG:
    stamp(5)
    a("s_cmp_lg_u32 s3, 0\ns_cbranch_scc1 L_end")
    a("s_waitcnt lgkmcnt(0) vmcnt(0)\ns_mov_b64 exec, 1")
    a("s_mov_b32 s52, s40\ns_mov_b32 s53, s41\ns_mov_b32 s54, 0x40000000\ns_mov_b32 s55, 0x20000")
    a(f"s_lshl_b32 s12, s2, 8\ns_add_u32 s12, s12, {0x200000}\nv_mov_b32 v4, 0")
    for k in range(6):
        a(f"v_mov_b32 v5, s{72+2*k}\nbuffer_store_dword v5, v4, {WS}, s12 offen offset:{k*4}")
a("s_endpgm")

a.label("L_aux2")

a("s_cmp_lt_u32 s3, 2\ns_cbranch_scc1 L_hunit_done\ns_cmp_eq_u32 s3, 2\ns_cbranch_scc1 L_hunit\ns_cmp_lt_u32 s62, 2\ns_cbranch_scc0 L_hunit_done")
a.label("L_hunit")
x_addr()
a(f"""
s_sub_u32 s10, s3, 2
s_lshl_b32 s10, s10, 4
s_add_u32 s63, s62, s10
s_mul_i32 s8, s4, 576
s_lshl_b32 s9, s63, 5
s_add_u32 s8, s8, s9
s_mov_b32 s9, 9216
s_mov_b32 s44, s16
s_mov_b32 s45, s17
s_mov_b32 s46, 2304
s_mov_b32 s47, 0x20000
s_mov_b32 s48, s28
s_mov_b32 s49, s29
s_mov_b32 s50, {576*9216}
s_mov_b32 s51, 0x20000
v_lshrrev_b32 v8, 1, v2
v_lshlrev_b32 v8, 2, v8
v_add_lshl_u32 v8, v8, v3, 3
v_mul_lo_u32 v8, v8, s9
v_and_b32 v9, 1, v2
v_lshl_add_u32 v8, v9, 4, v8
v_add_u32 v8, s8, v8
v_cmp_gt_u32 vcc, 12, v2
v_mov_b32 v9, 0x40000000
v_cndmask_b32 v8, v9, v8, vcc
""")
vm = VM()
x_issue(vm)
for j in range(1, 8): a(f"v_add_u32 v{8+j}, s9, v{8+j-1}")
a("s_mul_i32 s11, s9, 192\ns_mov_b32 s10, 0")
for st in range(3):
    for j in range(8):
        a(f"buffer_load_dwordx4 {vr(RING[st]+j*4)}, v{8+j}, s[48:51], s10 offen {NT}"); vm.issue(('w', st))
    if st < 2: a("s_add_u32 s10, s10, s11")
a(f"""
s_mov_b32 s64, s30
s_mov_b32 s65, s31
s_mov_b32 s66, 9216
s_mov_b32 s67, 0x20000
v_lshlrev_b32 v46, 1, v2
buffer_load_ushort v47, v46, s[64:67], s8 offen
"""); vm.issue('b1')
layernorm(vm)
a(f"""
v_and_b32 v199, 1, v2
v_mul_u32_u24 v199, 1536, v199
v_lshrrev_b32 v200, 1, v2
v_lshl_add_u32 v199, v200, 6, v199
v_lshl_add_u32 v199, v3, 4, v199
v_add_u32 v199, s13, v199
s_waitcnt lgkmcnt(0)
""")
for st in range(3): a(f"ds_read_b128 {vr(16+4*st)}, v199 offset:{st*384}")
a("s_waitcnt lgkmcnt(0)")
for st in range(3):
    vm.wait(('w', st))
    gemv_tile(RING[st], 16+4*st, st == 0)
a(f"""
v_and_b32 v200, 2, v2
v_cmp_ne_u32 vcc, 0, v200
s_lshl_b32 s13, s3, 10
s_add_u32 s13, s13, {L_RED}
v_and_b32 v200, 1, v2
v_lshlrev_b32 v200, 8, v200
v_lshrrev_b32 v201, 1, v2
v_lshl_add_u32 v200, v201, 2, v200
v_add_u32 v200, s13, v200
""")
for b in range(2):
    for e in range(8):
        a(f"v_cndmask_b32 v{16+b*8+e}, v{O+4*e+b}, v{O+4*e+2+b}, vcc")
a("s_mov_b32 exec_lo, 0x00f0000f\ns_mov_b32 exec_hi, 0x00000f00")
for b in range(2):
    for e in range(8):
        a(f"ds_write_b32 v200, v{16+b*8+e} offset:{b*512+e*32}")
a(f"""
s_mov_b64 exec, -1
v_lshl_add_u32 v201, v0, 5, s13
s_waitcnt lgkmcnt(0)
s_mov_b32 exec_lo, -1
s_mov_b32 exec_hi, 0
ds_read_b128 v[16:19], v201
ds_read_b64 v[20:21], v201 offset:16
s_waitcnt lgkmcnt(0)
v_add_f32 v16, v16, v17
v_add_f32 v18, v18, v19
v_add_f32 v20, v20, v21
v_add_f32 v16, v16, v18
v_add_f32 v16, v16, v20
""")
vm.wait('b1')
a(f"""
v_lshlrev_b32 v47, 16, v47
v_cvt_pk_bf16_f32 v16, v16, v16
v_lshlrev_b32 v16, 16, v16
v_add_f32 v16, v16, v47
v_cvt_pk_bf16_f32 v16, v16, v16
v_lshlrev_b32 v16, 16, v16
v_max_f32 v16, 0, v16
v_mul_f32 v16, v16, v16
v_cvt_pk_bf16_f32 v16, v16, v16
v_lshlrev_b32 v16, 16, v16
v_min_u32 v16, -2, v16
s_mul_i32 s8, s4, 2304
s_lshl_b32 s9, s63, 6
s_add_u32 s8, s8, s9
s_add_u32 s8, s8, {W_H}
v_lshrrev_b32 v17, 4, v0
v_mul_u32_u24 v17, 1152, v17
v_lshl_add_u32 v17, v2, 2, v17
buffer_store_dword v16, v17, {WS}, s8 offen sc0 sc1
s_mov_b64 exec, -1
""")
a.label("L_hunit_done")
vm = VM()
a(f"""
v_mul_u32_u24 v8, {8*1152}, v3
v_lshl_add_u32 v8, v2, 4, v8
""")
for j in range(1, 8): a(f"v_add_u32 v{8+j}, {j*1152}, v8")
a(f"""
s_mul_i32 s10, s4, 288
s_lshl_b32 s11, s3, 6
s_add_u32 s10, s10, s11
s_mul_i32 s14, s10, 1152
s_mul_i32 s11, s6, 144
s_add_u32 s14, s14, s11
s_mov_b32 s48, s32
s_mov_b32 s49, s33
s_mov_b32 s50, {4608*1152}
s_mov_b32 s51, 0x20000
s_mov_b32 exec_lo, 0x01ff01ff
s_mov_b32 exec_hi, 0x01ff01ff
""")
def issue_tile(tag, base, srd, extra=''):
    for j in range(8):
        a(f"buffer_load_dwordx4 {vr(base+j*4)}, v{8+j}, s[{srd}:{srd+3}], s14 offen {extra}"); vm.issue(tag)
issue_tile('w20', 96, 48); a(f"s_add_u32 s14, s14, {32*1152}")
issue_tile('w21', 128, 48); a(f"s_add_u32 s14, s14, {32*1152}")
a("s_cmp_eq_u32 s3, 3\ns_cbranch_scc0 L_no_w22a")
vm3 = None
for j in range(8):
    a(f"buffer_load_dwordx4 {vr(160+j*4)}, v{8+j}, s[48:51], s14 offen")
a.label("L_no_w22a")
a("s_mov_b64 exec, -1")
a(f"""
s_mul_i32 s8, s4, 2304
s_mul_i32 s9, s5, 1152
s_add_u32 s8, s8, s9
s_lshl_b32 s9, s3, 8
s_add_u32 s8, s8, s9
s_add_u32 s8, s8, {W_H}
v_lshlrev_b32 v4, 2, v0
v_add_u32 v5, 256, v4
v_cmp_gt_u32 vcc, 32, v0
v_mov_b32 v6, 0x7ffffff0
v_cndmask_b32 v5, v6, v5, vcc
s_cmp_eq_u32 s3, 3
s_cselect_b32 s9, 0, 0x40000000
v_add_u32 v5, s9, v5
""")
def body():
    a(f"buffer_load_dword v16, v4, {WS}, s8 offen sc0 sc1\nbuffer_load_dword v17, v5, {WS}, s8 offen sc0 sc1\ns_waitcnt vmcnt(0)")
    a("v_max_u32 v18, v16, v17\nv_cmp_eq_u32 vcc, -1, v18")
spin("h", body, "s_cbranch_vccz")
a(f"""
s_lshl_b32 s13, s3, 8
s_add_u32 s13, s13, {L_OB}
v_lshl_add_u32 v6, v0, 1, s13
ds_write_b16_d16_hi v6, v16
ds_write_b16_d16_hi v6, v17 offset:128
v_lshl_add_u32 v7, v3, 4, s13
s_waitcnt lgkmcnt(0)
ds_read_b128 v[16:19], v7
ds_read_b128 v[20:23], v7 offset:64
ds_read_b128 v[24:27], v7 offset:128
s_waitcnt lgkmcnt(0)
""")
gemv_tile(96, 16, True); gemv_tile(128, 20, False)
a("s_cmp_eq_u32 s3, 3\ns_cbranch_scc0 L_no_w22b")
gemv_tile(160, 24, False)
a.label("L_no_w22b")
stamp(4)
vm = VM()
a(f"""
s_lshl_b32 s10, s4, 8
s_lshl_b32 s11, s3, 6
s_add_u32 s10, s10, s11
s_mul_i32 s14, s10, 1152
s_mul_i32 s11, s6, 144
s_add_u32 s14, s14, s11
s_mov_b32 s48, s24
s_mov_b32 s49, s25
s_mov_b32 s50, {4096*1152}
s_mov_b32 exec_lo, 0x01ff01ff
s_mov_b32 exec_hi, 0x01ff01ff
""")
issue_tile('wo0', 96, 48); a(f"s_add_u32 s14, s14, {32*1152}")
issue_tile('wo1', 128, 48)
a("s_mov_b64 exec, -1")
WX = 192
for rt in range(2):
    vm.wait(f'wo{rt}')
    base = 96 + rt*32
    for i in range(4):
        for hlf, sel in enumerate((SEL_LO, SEL_HI)):
            for jj in range(4):
                a(f"v_perm_b32 v{WX + rt*32 + (2*i+hlf)*4 + jj}, v{base+(2*jj+1)*4+i}, v{base+(2*jj)*4+i}, {sel}")
a("s_cmp_lg_u32 s3, 1\ns_cbranch_scc1 L_nobase\ns_lshl_b32 s8, s6, 1\ns_cmp_lg_u32 s8, s4\ns_cbranch_scc1 L_nobase")
a(f"""
s_mov_b32 s64, s34
s_mov_b32 s65, s35
s_mov_b32 s66, 1152
s_mov_b32 s67, 0x20000
s_mul_i32 s8, s6, 144
v_lshlrev_b32 v5, 2, v0
buffer_load_dword v28, v5, s[64:67], s8 offen
s_mul_i32 s9, s5, 1152
s_add_u32 s8, s8, s9
s_mov_b32 s44, s16
s_mov_b32 s45, s17
s_mov_b32 s46, 2304
s_mov_b32 s47, 0x20000
buffer_load_dword v29, v5, s[44:47], s8 offen
v_lshlrev_b32 v4, 4, v2
""")
def body():
    a("global_load_dword v30, v4, s[38:39] sc1\ns_waitcnt vmcnt(0)\nv_cmp_gt_u32 vcc, 16, v30")
spin("all", body, "s_cbranch_vccz")
a("""
v_and_b32 v31, 0xffff0000, v28
v_lshlrev_b32 v30, 16, v28
v_and_b32 v47, 0xffff0000, v29
v_lshlrev_b32 v46, 16, v29
v_add_f32 v30, v30, v46
v_add_f32 v31, v31, v47
""")
a.label("L_nobase")
stamp(5)
a(f"""
s_lshl_b32 s8, s7, 13
s_add_u32 s9, s8, 4096
s_lshl_b32 s10, s3, 8
v_lshl_add_u32 v4, v0, 2, s10
s_lshl_b32 s10, s7, 7
s_lshr_b32 s11, s3, 1
s_lshl_b32 s11, s11, 6
s_add_u32 s10, s10, s11
s_add_u32 s10, s10, {W_ML}
v_mov_b32 v5, 0
s_barrier
""")
stamp(6)
a("s_cmp_lg_u32 s3, 0\ns_cbranch_scc1 L_l1")
a(f"""
v_lshlrev_b32 v6, 4, v0
v_lshrrev_b32 v7, 5, v0
v_lshlrev_b32 v7, 3, v7
""")
for w in range(4):
    a(f"ds_read_b128 {vr(96+4*w)}, v6 offset:{L_AO + w*1024}")
    a(f"ds_read_b64 v[{112+2*w}:{113+2*w}], v7 offset:{L_AML + w*16}")
a(f"""
s_waitcnt lgkmcnt(0)
v_max3_f32 v120, v112, v114, v116
v_max_f32 v120, v120, v118
""")
for w in range(4):
    a(f"v_sub_f32 v{122+w}, v{112+2*w}, v120\nv_mul_f32 v{122+w}, {SC}, v{122+w}\nv_exp_f32 v{122+w}, v{122+w}")
a("v_mul_f32 v121, v122, v113")
for w in range(1, 4): a(f"v_fmac_f32 v121, v{122+w}, v{113+2*w}")
for k in range(4):
    a(f"v_mul_f32 v{128+k}, v122, v{96+k}")
    for w in range(1, 4): a(f"v_fmac_f32 v{128+k}, v{122+w}, v{96+4*w+k}")
for k in range(4): a(f"v_min_u32 v{128+k}, -2, v{128+k}")
a(f"""
v_min_u32 v120, -2, v120
v_min_u32 v121, -2, v121
s_lshl_b32 s12, s6, 10
s_add_u32 s12, s12, s8
buffer_store_dwordx4 v[128:131], v6, {WS}, s12 offen sc0 sc1
s_lshl_b32 s12, s7, 7
s_lshl_b32 s13, s6, 3
s_add_u32 s12, s12, s13
s_add_u32 s12, s12, {W_ML}
v_lshlrev_b32 v7, 1, v0
s_mov_b32 exec_lo, 1
s_mov_b32 exec_hi, 1
buffer_store_dwordx2 v[120:121], v7, {WS}, s12 offen sc0 sc1
s_mov_b64 exec, -1
""")
a.label("L_l1")
def body():
    for s_ in range(8):
        a(f"buffer_load_dword v{96+s_}, v4, {WS}, {'s8' if s_ < 4 else 's9'} offen offset:{(s_%4)*1024} sc0 sc1")
    for k in range(4):
        a(f"buffer_load_dwordx4 {vr(104+4*k)}, v5, {WS}, s10 offen offset:{k*16} sc0 sc1")
    a("s_waitcnt vmcnt(0)")
    a("v_max3_u32 v120, v96, v97, v98")
    for k in range(99, 119, 2): a(f"v_max3_u32 v120, v120, v{k}, v{k+1}")
    a("v_max_u32 v120, v120, v119\nv_cmp_eq_u32 vcc, -1, v120")
spin("l1", body, "s_cbranch_vccz")
stamp(7)
a("v_max3_f32 v120, v104, v106, v108\nv_max3_f32 v120, v120, v110, v112\nv_max3_f32 v120, v120, v114, v116\nv_max_f32 v120, v120, v118")
for s_ in range(8):
    a(f"v_sub_f32 v{122+s_}, v{104+2*s_}, v120\nv_mul_f32 v{122+s_}, {SC}, v{122+s_}\nv_exp_f32 v{122+s_}, v{122+s_}")
a("v_mul_f32 v121, v122, v105\nv_mul_f32 v130, v122, v96")
for s_ in range(1, 8):
    a(f"v_fmac_f32 v121, v{122+s_}, v{105+2*s_}\nv_fmac_f32 v130, v{122+s_}, v{96+s_}")
a(f"""
v_rcp_f32 v121, v121
v_mul_f32 v130, v130, v121
v_cvt_pk_bf16_f32 v130, v130, v130
s_lshl_b32 s12, s3, 8
s_add_u32 s12, s12, {L_OB}
v_lshl_add_u32 v6, v0, 1, s12
ds_write_b16 v6, v130
v_lshl_add_u32 v7, v3, 4, s12
s_waitcnt lgkmcnt(0)
ds_read_b128 v[132:135], v7
ds_read_b128 v[136:139], v7 offset:64
s_waitcnt lgkmcnt(0)
""")
for rt in range(2):
    for e in range(8):
        D = vr(O+4*e)
        a(f"v_mfma_f32_16x16x32_bf16 {D}, {vr(132+4*rt)}, {vr(WX+rt*32+e*4)}, {D}")
a(f"s_lshl_b32 s12, s3, 9\ns_add_u32 s12, s12, {L_YP}\nv_lshl_add_u32 v6, v2, 5, s12\ns_mov_b64 exec, 0xffff")
for e in range(0, 8, 2):
    a(f"ds_write2_b32 v6, v{O+4*e}, v{O+4*(e+1)} offset0:{e} offset1:{e+1}")
a("s_mov_b64 exec, -1\ns_waitcnt lgkmcnt(0)\ns_barrier")
stamp(8)
a("s_cmp_eq_u32 s3, 1\ns_cbranch_scc1 L_final\ns_cmp_lg_u32 s3, 0\ns_cbranch_scc1 L_endaux")
a(f"""
s_mov_b64 exec, 0x3ffff
v_lshlrev_b32 v6, 4, v0
""")
for w in range(4): a(f"ds_read_b128 {vr(96+4*w)}, v6 offset:{L_YP + w*512}")
a("s_waitcnt lgkmcnt(0)")
for k in range(4):
    a(f"v_add_f32 v{96+k}, v{96+k}, v{100+k}\nv_add_f32 v{104+k}, v{104+k}, v{108+k}\nv_add_f32 v{96+k}, v{96+k}, v{104+k}\nv_min_u32 v{96+k}, -2, v{96+k}")
a(f"""
s_mul_i32 s8, s5, {8*16*288}
s_mul_i32 s9, s6, {16*288}
s_add_u32 s8, s8, s9
s_mul_i32 s9, s4, 288
s_add_u32 s8, s8, s9
s_add_u32 s8, s8, {W_Y}
buffer_store_dwordx4 v[96:99], v6, {WS}, s8 offen sc0 sc1
s_branch L_endaux
""")
a.label("L_final")
a(f"""
s_lshl_b32 s8, s6, 1
s_cmp_lg_u32 s8, s4
s_cbranch_scc1 L_endaux
s_mul_i32 s8, s5, {8*16*288}
s_mul_i32 s9, s6, {16*288}
s_add_u32 s8, s8, s9
s_add_u32 s8, s8, {W_Y}
s_add_u32 s9, s8, {8*288}
s_mov_b32 exec_lo, -1
s_mov_b32 exec_hi, 0xf
v_lshlrev_b32 v4, 3, v0
""")
def body():
    for k in range(16):
        a(f"buffer_load_dwordx2 v[{96+2*k}:{97+2*k}], v4, {WS}, {'s8' if k < 8 else 's9'} offen offset:{(k%8)*288} sc0 sc1")
    a("s_waitcnt vmcnt(0)")
    a("v_max3_u32 v130, v96, v97, v98")
    for k in range(99, 127, 2): a(f"v_max3_u32 v130, v130, v{k}, v{k+1}")
    a("v_max_u32 v130, v130, v127\nv_cmp_eq_u32 vcc, -1, v130")
spin("fin", body, "s_cbranch_vccz")
for st in (1, 2, 4, 8):
    for k in range(0, 16, 2*st):
        a(f"v_add_f32 v{96+2*k}, v{96+2*k}, v{96+2*(k+st)}\nv_add_f32 v{97+2*k}, v{97+2*k}, v{97+2*(k+st)}")
a(f"""
v_add_f32 v96, v96, v30
v_add_f32 v97, v97, v31
v_cvt_pk_bf16_f32 v96, v96, v97
s_mov_b32 s64, s36
s_mov_b32 s65, s37
s_mov_b32 s66, 2304
s_mov_b32 s67, 0x20000
s_mul_i32 s8, s6, 144
s_mul_i32 s9, s5, 1152
s_add_u32 s8, s8, s9
v_lshlrev_b32 v5, 2, v0
buffer_store_dword v96, v5, s[64:67], s8 offen
""")
a.label("L_endaux")
if DBG:
    stamp(9)
    a("s_waitcnt lgkmcnt(0) vmcnt(0)\ns_mov_b64 exec, 1")
    a(f"s_lshl_b32 s12, s2, 9\ns_lshl_b32 s13, s3, 6\ns_add_u32 s12, s12, s13\ns_add_u32 s12, s12, {0x280000}\nv_mov_b32 v4, 0")
    for k in range(10):
        a(f"v_mov_b32 v5, s{72+2*k}\nbuffer_store_dword v5, v4, {WS}, s12 offen offset:{k*4}")
a.label("L_end")
a("s_endpgm")

ref = open('cdna_kernels/' + NAME + '.s.ref').read().split('\n')
hdr = [l for l in ref if l.startswith(';') and '@launch' not in l]
out = "\n".join(hdr) + f"\n; @launch grid=(256,1,1) block=(512,1,1) lds={LDS_BYTES}\n"
out += f""".amdgcn_target "amdgcn-amd-amdhsa--gfx950"
.text
.globl {NAME}_kernel
.p2align 8
.type {NAME}_kernel,@function
{NAME}_kernel:
""" + a.text() + f""".section .rodata,"a"
.p2align 6
.amdhsa_kernel {NAME}_kernel
  .amdhsa_next_free_vgpr 256
  .amdhsa_next_free_sgpr 96
  .amdhsa_accum_offset 256
  .amdhsa_group_segment_fixed_size 0
  .amdhsa_kernarg_size 104
  .amdhsa_user_sgpr_count 2
  .amdhsa_user_sgpr_kernarg_segment_ptr 1
  .amdhsa_system_sgpr_workgroup_id_x 1
.end_amdhsa_kernel
"""
open(sys.argv[1], 'w').write(out)
print("lines", len(a.lines), "nops", a.nops)
```

```python
import sys, struct, math
from asmlib import *
NAME = "parallel_sum__gqa_block_cached__dense_activation_squared_relu__decode"
def f32(x): return struct.unpack('<I', struct.pack('<f', x))[0]
CSCALE = f32((128 ** -0.5) * math.log2(math.e))
OPT = dict(nt='nt', wnt='nt', dbg=0, prio=3, spin=0x10000, pace=8, noaux=0, nosoft=0, hold=0, hdelay=3, slowsleep=32, ldspf=0, xcontig=0, dyn=0, lin=0)
for arg in sys.argv[2:]:
    k, v = arg.split('='); OPT[k] = v if not v.lstrip('-').isdigit() else int(v)
NT = OPT['nt']; WNT = OPT['wnt']; DBG = OPT['dbg']; SPIN = OPT['spin']
if WNT == 'none': WNT = ''
L_Q = 0x0000
L_FLAG = 0x0200
L_YP = 0x0400
L_AO = 0x1400
L_AML = 0x2400
L_OB = 0x2500
L_XN = 0x2D00
L_PF = 0x5D00
LDS_BYTES = 0x5D00 + (0x20000 if OPT['ldspf'] else 0)
W_CTR = 0x44000; W_O = 0; W_ML = 0x40000; W_Q = 0x48000; W_H = 0x68000; W_Y = 0x90000
a = Asm()
class VM:
    def __init__(s): s.q = []
    def issue(s, tag): s.q.append(tag)
    def wait(s, tag):
        idx = max(i for i, t in enumerate(s.q) if t == tag)
        n = len(s.q) - 1 - idx
        assert n <= 63
        a(f"s_waitcnt vmcnt({n})"); s.q = s.q[idx+1:]
def stamp(k):
    if DBG: a(f"s_memrealtime s[{72+2*k}:{73+2*k}]")
def vr(b, n=4): return f"v[{b}:{b+n-1}]"
S0, S1, P, XA, XB, O = 32, 36, 40, 48, 56, 64
Q = 16
KB = [96, 128]; VB = [160, 192]
SEL_LO, SEL_HI, SC = 's59', 's60', 's58'
WS = 's[52:55]'
def xswap16(v, t, op):
    a(f"v_mov_b32 v{t}, v{v}\nv_permlane16_swap_b32 v{v}, v{t}\n{op} v{v}, v{v}, v{t}")
def xswap32(v, t, op):
    a(f"v_mov_b32 v{t}, v{v}\nv_permlane32_swap_b32 v{v}, v{t}\n{op} v{v}, v{v}, v{t}")
def xreduce(v, t, op): xswap16(v, t, op); xswap32(v, t, op)
def rowreduce(v, op):
    for m in ("quad_perm:[1,0,3,2]", "quad_perm:[2,3,0,1]", "row_half_mirror", "row_mirror"):
        a(f"{op}_dpp v{v}, v{v}, v{v} {m} row_mask:0xf bank_mask:0xf")
def perm_mfma(base, fn):
    for i in range(4):
        X = XA if i % 2 == 0 else XB
        for jj in range(4):
            a(f"v_perm_b32 v{X+jj}, v{base+(2*jj+1)*4+i}, v{base+(2*jj)*4+i}, {SEL_LO}")
        for jj in range(4):
            a(f"v_perm_b32 v{X+4+jj}, v{base+(2*jj+1)*4+i}, v{base+(2*jj)*4+i}, {SEL_HI}")
        for hlf in range(2): fn(2*i+hlf, X+4*hlf)
def gemv_tile(base, A, first):
    perm_mfma(base, lambda e, X: a(f"v_mfma_f32_16x16x32_bf16 {vr(O+e*4)}, {vr(A)}, {vr(X)}, {'0' if first else vr(O+e*4)}"))
uid = [0]
def spin(name, body, okcond_branch, sleep=1):
    a(f"s_mov_b32 s12, {SPIN}")
    a.label(f"L_{name}_poll")
    body()
    a(f"{okcond_branch} L_{name}_ok")
    a(f"s_sleep {sleep}\ns_sub_u32 s12, s12, 1\ns_cmp_lg_u32 s12, 0\ns_cbranch_scc1 L_{name}_poll")
    a.label(f"L_{name}_ok")
def anyinvalid(dst, regs):
    regs = list(regs)
    if len(regs) == 1:
        a(f"v_cmp_eq_u32 vcc, -1, v{regs[0]}"); return
    if len(regs) == 2:
        a(f"v_max_u32 v{dst}, v{regs[0]}, v{regs[1]}")
    else:
        a(f"v_max3_u32 v{dst}, v{regs[0]}, v{regs[1]}, v{regs[2]}")
        rest = regs[3:]
        while len(rest) >= 2:
            a(f"v_max3_u32 v{dst}, v{dst}, v{rest[0]}, v{rest[1]}"); rest = rest[2:]
        if rest: a(f"v_max_u32 v{dst}, v{dst}, v{rest[0]}")
    a(f"v_cmp_eq_u32 vcc, -1, v{dst}")

if OPT['lin']:
    MAPCODE = "s_lshr_b32 s7, s2, 3\ns_and_b32 s6, s2, 7\ns_and_b32 s4, s7, 15\ns_lshr_b32 s5, s7, 4"
else:
    MAPCODE = """s_and_b32 s4, s2, 7
s_lshl_b32 s4, s4, 1
s_lshr_b32 s8, s2, 3
s_and_b32 s9, s8, 1
s_add_u32 s4, s4, s9
s_bfe_u32 s5, s8, 0x10001
s_lshr_b32 s6, s8, 2
s_lshl_b32 s7, s5, 4
s_add_u32 s7, s7, s4"""
a(f"""
s_cmp_ge_u32 s2, 256
s_cbranch_scc1 L_end
s_load_dwordx16 s[16:31], s[0:1], 0
s_load_dwordx8 s[32:39], s[0:1], 64
s_load_dwordx2 s[40:41], s[0:1], 96
v_lshrrev_b32 v1, 6, v0
v_and_b32 v0, 63, v0
v_readfirstlane_b32 s3, v1
{MAPCODE}
v_and_b32 v2, 15, v0
v_lshrrev_b32 v3, 4, v0
{"s_memrealtime s[72:73]" if DBG else ""}
s_mov_b32 {SEL_LO}, 0x05040100
s_mov_b32 {SEL_HI}, 0x07060302
s_mov_b32 {SC}, {CSCALE:#x}
s_lshl_b32 s62, s5, 3
s_add_u32 s62, s62, s6
v_mov_b32 v4, 0
v_mov_b32 v5, {L_FLAG}
s_cmp_ge_u32 s3, 4
s_cbranch_scc1 L_aux
""")
a(f"""
v_lshlrev_b32 v4, 8, v2
v_lshl_add_u32 v4, v3, 4, v4
v_lshlrev_b32 v5, 10, v3
v_lshl_add_u32 v5, v2, 4, v5
s_lshl_b32 s8, s7, 23
s_lshl_b32 s9, s6, 20
s_lshl_b32 s56, s3, 13
s_add_u32 s56, s56, s9
s_add_u32 s57, s56, 4096
s_mov_b32 s46, 0x800000
s_mov_b32 s47, 0x20000
s_mov_b32 s50, 0x800000
s_mov_b32 s51, 0x20000
s_mov_b32 s54, 0x40000000
s_mov_b32 s55, 0x20000
s_lshl_b32 s62, s7, 8
s_add_u32 s62, s62, {W_CTR}
v_mov_b32 v226, 0
s_waitcnt lgkmcnt(0)
s_mov_b32 s52, s40
s_mov_b32 s53, s41
s_add_u32 s44, s18, s8
s_addc_u32 s45, s19, 0
s_add_u32 s48, s20, s8
s_addc_u32 s49, s21, 0
s_barrier
""")
if OPT['hold']: a("s_barrier")
def k_load(slot, j):
    t, jj = j >> 2, j & 3
    a(f"buffer_load_dwordx4 {vr(KB[slot]+(t*4+jj)*4)}, v4, s[44:47], s{56+t} offen offset:{jj*64} {NT}")
def v_load(slot, j):
    t, r = j >> 2, j & 3
    a(f"buffer_load_dwordx4 {vr(VB[slot]+(t*4+r)*4)}, v5, s[48:51], s{56+t} offen offset:{r*256} {NT}")
def issueK(slot):
    for j in range(8): k_load(slot, j)
def issueV(slot):
    for j in range(8): v_load(slot, j)
def advance():
    a("s_add_u32 s56, s56, 0x8000\ns_add_u32 s57, s57, 0x8000")
PACE = OPT['pace']
cnt = 0
for slot in range(2):
    for fn in (k_load, v_load):
        for j in range(8):
            if cnt >= PACE and cnt % 4 == 0: a(f"s_waitcnt vmcnt({PACE-4})")
            fn(slot, j); cnt += 1
    advance()
if OPT['ldspf']:
    a(f"s_lshl_b32 s63, s3, 15\ns_add_u32 s63, s63, {L_PF}")
    for tau in range(2):
        for j in range(8):
            t, jj = j >> 2, j & 3
            a(f"s_add_u32 m0, s63, {tau*16384 + j*1024 - jj*64}")
            a(f"buffer_load_dwordx4 v4, s[44:47], s{56+t} offen offset:{jj*64} {NT} lds")
        for j in range(8):
            t, r = j >> 2, j & 3
            a(f"s_add_u32 m0, s63, {tau*16384 + 8192 + j*1024 - r*256}")
            a(f"buffer_load_dwordx4 v5, s[48:51], s{56+t} offen offset:{r*256} {NT} lds")
        advance()
a("s_branch L_att_main")

def h_item(sid, srg, slc):
    a(f"""
s_cmp_ge_u32 {sid}, 72
s_cselect_b32 {srg}, 1, 0
s_cmp_ge_u32 {sid}, 144
s_cselect_b32 {srg}, 2, {srg}
s_cmp_ge_u32 {sid}, 216
s_cselect_b32 {srg}, 3, {srg}
s_mul_i32 {slc}, {srg}, 72
s_sub_u32 {slc}, {sid}, {slc}
""")
a.label("L_aux")
a(f"s_setprio {OPT['prio']}")
a("s_sub_u32 s3, s3, 4")
a("s_cmp_lg_u32 s3, 0\ns_cbranch_scc1 L_aux_unit")
a(f"""
ds_write_b32 v5, v4
v_mov_b32 v24, -1
v_mov_b32 v25, -1
v_mov_b32 v26, -1
v_mov_b32 v27, -1
""")
h_item('s2', 's10', 's11')
a(f"""
s_and_b32 s8, s62, 3
s_lshl_b32 s8, s8, 8
s_lshr_b32 s9, s62, 2
s_lshl_b32 s9, s9, 10
s_add_u32 s8, s8, s9
s_lshl_b32 s9, s4, 13
s_add_u32 s8, s8, s9
s_add_u32 s8, s8, {W_Q}
s_mul_i32 s10, s10, 36864
s_lshl_b32 s11, s11, 8
s_add_u32 s10, s10, s11
s_add_u32 s10, s10, {W_H}
s_lshl_b32 s11, s2, 8
s_add_u32 s11, s11, {W_H + 3*36864 + 40*256}
v_and_b32 v6, 1, v3
v_lshlrev_b32 v7, 4, v2
v_lshl_add_u32 v8, v6, 12, v7
v_add_u32 v8, s8, v8
v_mul_u32_u24 v9, 18432, v6
v_add_u32 v9, v9, v7
v_add_u32 v10, s11, v9
v_add_u32 v9, s10, v9
v_cmp_gt_u32 vcc, 32, v0
v_cndmask_b32 v9, v9, v8, vcc
s_lshl_b32 s13, s6, 15
s_lshl_b32 s14, s4, 10
s_add_u32 s13, s13, s14
s_lshl_b32 s14, s5, 9
s_add_u32 s13, s13, s14
s_add_u32 s13, s13, {W_Y}
v_lshrrev_b32 v11, 5, v0
v_lshlrev_b32 v11, 14, v11
v_and_b32 v6, 31, v0
v_lshl_add_u32 v11, v6, 4, v11
s_lshl_b32 s8, s7, 13
s_lshl_b32 s9, s6, 10
s_add_u32 s8, s8, s9
v_lshlrev_b32 v12, 4, v0
s_lshl_b32 s9, s7, 7
s_lshl_b32 s14, s6, 3
s_add_u32 s9, s9, s14
s_add_u32 s9, s9, {W_ML}
v_lshlrev_b32 v13, 6, v0
s_mov_b32 s54, 0x40000000
s_mov_b32 s55, 0x20000
s_waitcnt lgkmcnt(0)
s_mov_b32 s52, s40
s_mov_b32 s53, s41
buffer_store_dwordx4 v[24:27], v9, {WS}, 0 offen sc0 sc1
buffer_store_dwordx4 v[24:27], v12, {WS}, s8 offen sc0 sc1
buffer_store_dwordx4 v[24:27], v11, {WS}, s13 offen sc0 sc1
s_mov_b64 exec, 3
buffer_store_dwordx2 v[24:25], v13, {WS}, s9 offen sc0 sc1
s_cmp_lg_u32 s6, 0
s_cbranch_scc1 L_noctr
s_mov_b64 exec, 1
v_mov_b32 v28, 0
s_lshl_b32 s14, s7, 8
s_add_u32 s14, s14, {W_CTR}
buffer_store_dword v28, v28, {WS}, s14 offen sc0 sc1
L_noctr:
s_cmp_lt_u32 s2, 32
s_cbranch_scc0 L_noh2reset
s_mov_b32 exec_hi, 0
s_mov_b32 exec_lo, -1
buffer_store_dwordx4 v[24:27], v10, {WS}, 0 offen sc0 sc1
""")
a.label("L_noh2reset")
a(f"""
s_barrier
{"s_barrier" if OPT['hold'] == 2 else ""}
s_mov_b64 exec, 1
s_lshl_b32 s11, s4, 4
v_mov_b32 v14, s11
v_mov_b32 v15, 1
s_waitcnt vmcnt(0)
global_atomic_add v14, v15, s[38:39] sc1
ds_write_b32 v5, v15
""")
if OPT['hold'] == 1: a("s_barrier")
stamp(1)
def body():
    a("global_load_dword v16, v14, s[38:39] sc1\ns_waitcnt vmcnt(0)\nv_readfirstlane_b32 s8, v16\ns_cmp_ge_u32 s8, 16")
spin("fam", body, "s_cbranch_scc1")
stamp(2)
a(f"""
s_mov_b64 exec, -1
s_lshl_b32 s8, s4, 13
s_lshl_b32 s9, s5, 12
s_add_u32 s8, s8, s9
s_add_u32 s8, s8, {W_Q}
""")
def body():
    for rg in range(4):
        a(f"buffer_load_dwordx4 {vr(16+4*rg)}, v12, {WS}, s8 offen offset:{rg*1024} sc0 sc1")
    a("s_waitcnt vmcnt(0)")
    anyinvalid(32, range(16, 32))
spin("q", body, "s_cbranch_vccz")
for k in range(4):
    a(f"v_add_f32 v{16+k}, v{16+k}, v{20+k}\nv_add_f32 v{24+k}, v{24+k}, v{28+k}\nv_add_f32 v{16+k}, v{16+k}, v{24+k}")
a(f"""
v_cvt_pk_bf16_f32 v16, v16, v17
v_cvt_pk_bf16_f32 v17, v18, v19
v_lshlrev_b32 v20, 3, v0
ds_write_b64 v20, v[16:17] offset:{L_Q}
s_waitcnt lgkmcnt(0)
""")
stamp(3)
a("s_barrier\ns_branch L_aux2")

def layernorm(vm):
    vm.wait('x')
    for k in range(10):
        a(f"v_lshlrev_b32 v{26+2*k}, 16, v{16+k}\nv_and_b32 v{27+2*k}, 0xffff0000, v{16+k}")
    a("v_add_f32 v192, v26, v27\nv_add_f32 v193, v28, v29")
    for k in range(4, 20, 2): a(f"v_add_f32 v192, v192, v{26+k}\nv_add_f32 v193, v193, v{27+k}")
    a("v_add_f32 v192, v192, v193")
    rowreduce(192, "v_add_f32"); xswap16(192, 193, "v_add_f32")
    a(f"v_mul_f32 v192, {f32(1.0/576):#x}, v192")
    a("v_and_b32 v193, 16, v0\nv_cmp_eq_u32 vcc, 0, v193\nv_mov_b32 v194, 0\nv_mov_b32 v196, 0")
    for k in range(0, 20, 2):
        a(f"v_sub_f32 v195, v{26+k}, v192\nv_sub_f32 v197, v{27+k}, v192")
        if k >= 16: a("v_cndmask_b32 v195, 0, v195, vcc\nv_cndmask_b32 v197, 0, v197, vcc")
        a("v_fmac_f32 v194, v195, v195\nv_fmac_f32 v196, v197, v197")
    a("v_add_f32 v194, v194, v196")
    rowreduce(194, "v_add_f32"); xswap16(194, 193, "v_add_f32")
    a(f"""
v_mul_f32 v194, {f32(1.0/576):#x}, v194
v_cvt_pk_bf16_f32 v193, v192, v194
v_lshlrev_b32 v192, 16, v193
v_and_b32 v194, 0xffff0000, v193
v_add_f32 v194, {f32(1e-5):#x}, v194
v_cvt_pk_bf16_f32 v194, v194, v194
v_lshlrev_b32 v194, 16, v194
v_sqrt_f32 v194, v194
v_cvt_pk_bf16_f32 v194, v194, v194
v_lshlrev_b32 v194, 16, v194
v_rcp_f32 v194, v194
""")
    for k in range(10):
        t0, t1 = (196, 197) if k % 2 == 0 else (198, 199)
        a(f"v_sub_f32 v{t0}, v{26+2*k}, v192\nv_sub_f32 v{t1}, v{27+2*k}, v192")
        a(f"v_cvt_pk_bf16_f32 v{t0}, v{t0}, v{t1}")
        a(f"v_and_b32 v{t1}, 0xffff0000, v{t0}\nv_lshlrev_b32 v{t0}, 16, v{t0}")
        a(f"v_mul_f32 v{t0}, v{t0}, v194\nv_mul_f32 v{t1}, v{t1}, v194")
        a(f"v_cvt_pk_bf16_f32 v{16+k}, v{t0}, v{t1}")
    a(f"""
s_mul_i32 s13, s3, 3072
s_add_u32 s13, s13, {L_XN}
v_lshrrev_b32 v198, 5, v0
v_mul_u32_u24 v198, 1536, v198
v_and_b32 v199, 31, v0
v_lshl_add_u32 v198, v199, 3, v198
v_add_u32 v198, s13, v198
""")
    for i in range(5): a(f"ds_write_b64 v198, v[{16+2*i}:{17+2*i}] offset:{i*256}")
RING = [96, 128, 160]
def unit_addr(stride):
    a(f"""
v_lshrrev_b32 v6, 5, v0
v_mul_u32_u24 v6, 1152, v6
v_and_b32 v7, 31, v0
v_lshl_add_u32 v6, v7, 3, v6
v_add_u32 v7, 0x400, v6
v_and_b32 v8, 16, v0
v_cmp_eq_u32 vcc, 0, v8
v_mov_b32 v9, 0x40000000
v_cndmask_b32 v7, v9, v7, vcc
v_lshrrev_b32 v8, 3, v2
v_mul_u32_u24 v8, 72, v8
v_lshl_add_u32 v8, v3, 3, v8
v_mul_u32_u24 v8, {stride}, v8
v_and_b32 v10, 7, v2
v_lshl_add_u32 v8, v10, 4, v8
v_add_u32 v8, s8, v8
v_cmp_gt_u32 vcc, 16, v0
v_cndmask_b32 v204, v9, v8, vcc
""")
def unit_run(stride, srg, st1=None, st2=None):
    vm = VM()
    for i in range(4):
        a(f"buffer_load_dwordx2 v[{16+2*i}:{17+2*i}], v6, s[44:47], 0 offen offset:{i*256}"); vm.issue('x')
    a("buffer_load_dwordx2 v[24:25], v7, s[44:47], 0 offen"); vm.issue('x')
    if OPT['xcontig'] and st1 is None:
        a("s_mul_i32 s10, s63, 18432\nv_lshl_add_u32 v8, v0, 4, s10\nv_mov_b32 v204, 0x40000000")
        stride = 1024
    for j in range(1, 8): a(f"v_add_u32 v{8+j}, {stride}, v{8+j-1}")
    for st in range(3):
        if st == 2 and OPT['xcontig'] and st1 is None:
            a(f"s_mov_b32 s10, {2*8192}")
            for j in range(8):
                a(f"buffer_load_dwordx4 {vr(RING[st]+j*4)}, v{8+j if j < 2 else 204}, s[48:51], s10 offen {WNT}"); vm.issue(('w', st))
            continue
        if st == 2:
            a("v_mov_b32 v8, v204")
            for j in range(1, 8): a(f"v_add_u32 v{8+j}, {stride}, v{8+j-1}")
        a(f"s_mov_b32 s10, {st*8192 if (OPT['xcontig'] and st1 is None) else st*32*stride}")
        for j in range(8):
            a(f"buffer_load_dwordx4 {vr(RING[st]+j*4)}, v{8+j}, s[48:51], s10 offen {WNT}"); vm.issue(('w', st))
    if st1 is not None: stamp(st1)
    if OPT['hold'] == 2 and st1 is not None: a("s_barrier")
    layernorm(vm)
    a(f"""
v_and_b32 v199, 1, v2
v_mul_u32_u24 v199, 1536, v199
v_bfe_u32 v200, v2, 1, 1
v_mul_u32_u24 v200, 144, v200
v_add_u32 v199, v199, v200
v_lshl_add_u32 v199, v3, 4, v199
s_mul_i32 s9, {srg}, 288
s_add_u32 s9, s9, s13
v_add_u32 v199, s9, v199
s_waitcnt lgkmcnt(0)
""")
    for st in range(3): a(f"ds_read_b128 {vr(16+4*st)}, v199 offset:{st*64}")
    if st2 is not None: stamp(st2)
    a("s_waitcnt lgkmcnt(0)")
    for st in range(3):
        vm.wait(('w', st))
        if st == 2 and OPT['hold'] == 1 and st1 is not None: a("s_barrier")
        gemv_tile(RING[st], 16+4*st, st == 0)
    a("v_and_b32 v200, 8, v2\nv_cmp_ne_u32 vcc, 0, v200")
    for b in range(2):
        for e in range(8):
            a(f"v_cndmask_b32 v{16+b*8+e}, v{O+4*e+b}, v{O+4*e+2+b}, vcc")
    for k in range(16):
        a(f"v_add_f32_dpp v{16+k}, v{16+k}, v{16+k} row_ror:8 row_mask:0xf bank_mask:0xf")
    for k in range(16): a(f"v_min_u32 v{16+k}, -2, v{16+k}")
def unit_publish(bstride):
    a(f"""
s_add_u32 s9, s8, {bstride}
v_lshlrev_b32 v200, 5, v2
s_mov_b64 exec, 0xff
buffer_store_dwordx4 v[16:19], v200, {WS}, s8 offen sc0 sc1
buffer_store_dwordx4 v[20:23], v200, {WS}, s8 offen offset:16 sc0 sc1
buffer_store_dwordx4 v[24:27], v200, {WS}, s9 offen sc0 sc1
buffer_store_dwordx4 v[28:31], v200, {WS}, s9 offen offset:16 sc0 sc1
s_mov_b64 exec, -1
""")

a.label("L_aux_unit")
a(f"""
s_mov_b32 s46, 2304
s_mov_b32 s47, 0x20000
s_mov_b32 s51, 0x20000
s_mov_b32 s54, 0x40000000
s_mov_b32 s55, 0x20000
s_cmp_eq_u32 s3, 1
s_cbranch_scc1 L_qunit
s_waitcnt lgkmcnt(0)
s_mov_b32 s52, s40
s_mov_b32 s53, s41
s_barrier
{"s_barrier" if OPT['hold'] else ""}
s_barrier
s_branch L_aux2
""")
a.label("L_qunit")
a(f"""
s_lshr_b32 s15, s62, 2
s_mul_i32 s9, s15, {144*8192}
s_lshl_b32 s8, s4, 9
s_add_u32 s8, s8, s9
s_and_b32 s9, s62, 3
s_lshl_b32 s9, s9, 7
s_add_u32 s8, s8, s9
""")
unit_addr(8192)
a(f"""
s_mov_b32 s50, {576*8192}
s_waitcnt lgkmcnt(0)
s_mov_b32 s44, s16
s_mov_b32 s45, s17
s_mov_b32 s48, s22
s_mov_b32 s49, s23
s_mov_b32 s52, s40
s_mov_b32 s53, s41
s_barrier
""")
unit_run(8192, 's15', 1, 2)
def body():
    a(f"v_mov_b32 v202, {L_FLAG}\nds_read_b32 v203, v202\ns_waitcnt lgkmcnt(0)\nv_readfirstlane_b32 s8, v203\ns_cmp_eq_u32 s8, 1")
spin("rst1", body, "s_cbranch_scc1")
a(f"""
s_and_b32 s8, s62, 3
s_lshl_b32 s8, s8, 8
s_lshl_b32 s9, s15, 10
s_add_u32 s8, s8, s9
s_lshl_b32 s9, s4, 13
s_add_u32 s8, s8, s9
s_add_u32 s8, s8, {W_Q}
""")
unit_publish(4096)
stamp(3)
a("s_barrier\ns_branch L_aux2")

a.label("L_att_main")
stamp(1)
a("s_barrier")
stamp(2)
a(f"""
v_and_b32 v6, 1, v2
v_lshlrev_b32 v6, 8, v6
v_lshl_add_u32 v6, v3, 4, v6
""")
for jj in range(4): a(f"ds_read_b128 {vr(Q+jj*4)}, v6 offset:{L_Q+jj*64}")
for k in range(32): a(f"v_mov_b32 v{O+k}, 0")
a("v_mov_b32 v8, 0xff800000\nv_mov_b32 v9, 0\nv_mov_b32 v10, 0\ns_waitcnt lgkmcnt(0)")
def p_qk(K, wK):
    a(f"s_waitcnt vmcnt({wK})")
def p_qk_mfma(K):
    for jj in range(4):
        for t in range(2):
            D = vr((S0, S1)[t])
            a(f"v_mfma_f32_16x16x32_bf16 {D}, {vr(K+(t*4+jj)*4)}, {vr(Q+jj*4)}, {'0' if jj == 0 else D}")
def p_soft():
    uid[0] += 1
    a(f"v_max3_f32 v11, v{S0}, v{S0+1}, v{S0+2}")
    a(f"v_max3_f32 v11, v11, v{S0+3}, v{S1}")
    a(f"v_max3_f32 v11, v11, v{S1+1}, v{S1+2}")
    a(f"v_max3_f32 v11, v11, v{S1+3}, v8")
    xreduce(11, 12, "v_max_f32")
    a(f"v_cmp_gt_f32 vcc, v11, v8")
    a(f"s_cbranch_vccz L_nors{uid[0]}")
    a(f"v_sub_f32 v12, v8, v11\nv_mul_f32 v12, {SC}, v12\nv_exp_f32 v12, v12\nv_mov_b32 v8, v11")
    a(f"v_mul_f32 v10, {SC}, v11\nv_sub_f32 v10, 0, v10")
    a("v_mul_f32 v9, v9, v12")
    for k in range(32): a(f"v_mul_f32 v{O+k}, v{O+k}, v12")
    a.label(f"L_nors{uid[0]}")
    for e in range(8): a(f"v_fma_f32 v{S0+e}, v{S0+e}, {SC}, v10")
    for e in range(8): a(f"v_exp_f32 v{S0+e}, v{S0+e}")
    for jj in range(4): a(f"v_cvt_pk_bf16_f32 v{P+jj}, v{S0+2*jj}, v{S0+2*jj+1}")
    a(f"v_add_f32 v12, v{S0}, v{S0+1}\nv_add_f32 v13, v{S0+2}, v{S0+3}\nv_add_f32 v14, v{S0+4}, v{S0+5}\nv_add_f32 v15, v{S0+6}, v{S0+7}")
    a("v_add_f32 v12, v12, v13\nv_add_f32 v14, v14, v15\nv_add_f32 v9, v9, v12\nv_add_f32 v9, v9, v14")
def p_pv(V):
    perm_mfma(V, lambda e, X: a(f"v_mfma_f32_16x16x32_bf16 {vr(O+e*4)}, {vr(X)}, {vr(P)}, {vr(O+e*4)}"))
def process(slot, prefetch, wK, wV, lds=None, claim=False, dynoff=False, drain=None):
    K = KB[slot]; V = VB[slot]
    if lds is not None: K = V = 224
    a(f"s_waitcnt vmcnt({wK})")
    if dynoff: a(f"v_readfirstlane_b32 s8, v{224+slot}")
    if lds is not None:
        for j in range(8): a(f"ds_read_b128 {vr(K+4*j)}, v7 offset:{lds*16384 + j*1024}")
        a("s_waitcnt lgkmcnt(0)")
    p_qk_mfma(K)
    if dynoff:
        NS = OPT['dyn']
        a(f"""
s_and_b32 s9, s8, 7
s_lshl_b32 s9, s9, 20
s_bfe_u32 s10, s8, 0x20003
s_lshl_b32 s10, s10, 13
s_add_u32 s9, s9, s10
s_lshr_b32 s10, s8, 5
s_add_u32 s10, s10, {NS}
s_lshl_b32 s10, s10, 15
s_add_u32 s56, s9, s10
s_add_u32 s57, s56, 4096
s_cmp_lt_u32 s8, {32*(32-NS)}
s_cselect_b32 s{64+slot}, 1, 0
s_cbranch_scc0 {drain}
""")
    if claim:
        a(f"s_mov_b64 exec, 1\nv_mov_b32 v{224+slot}, 1\nbuffer_atomic_add v{224+slot}, v226, {WS}, s62 offen sc0 sc1\ns_mov_b64 exec, -1")
    if prefetch: issueK(slot)
    if lds is not None:
        a(f"s_waitcnt vmcnt({wV})")
        for j in range(8): a(f"ds_read_b128 {vr(V+4*j)}, v7 offset:{lds*16384 + 8192 + j*1024}")
    p_soft()
    if lds is not None: a("s_waitcnt lgkmcnt(0)")
    else: a(f"s_waitcnt vmcnt({wV})")
    p_pv(V)
    if prefetch:
        issueV(slot)
        if not dynoff: advance()
stamp(3)
if OPT['ldspf']:
    a(f"s_lshl_b32 s63, s3, 15\ns_add_u32 s63, s63, {L_PF}\nv_lshl_add_u32 v7, v0, 4, s63")
    process(0, True, 56, 56); process(1, True, 56, 56)
    process(0, False, 56, 48, lds=0); process(0, False, 40, 32, lds=1)
    a("s_mov_b32 s61, 13")
elif not OPT['dyn']:
    a("s_mov_b32 s61, 15")
if not OPT['dyn']:
    a.label("L_att_loop")
    process(0, True, 24, 24); process(1, True, 24, 24)
    a("s_sub_u32 s61, s61, 1\ns_cmp_lg_u32 s61, 0\ns_cbranch_scc1 L_att_loop")
    process(0, False, 24, 16); process(1, False, 8, 0)
else:
    NS = OPT['dyn']
    assert NS % 2 == 0 and not OPT['ldspf']
    a(f"s_mov_b32 s61, {(NS-4)//2}\ns_mov_b32 s64, 1\ns_mov_b32 s65, 1")
    a.label("L_att_loop")
    process(0, True, 24, 24); process(1, True, 24, 24)
    a("s_sub_u32 s61, s61, 1\ns_cmp_lg_u32 s61, 0\ns_cbranch_scc1 L_att_loop")
    process(0, True, 24, 25, claim=True)
    process(1, True, 25, 26, claim=True)
    a.label("L_dyn_loop")
    process(0, True, 25, 26, claim=True, dynoff=True, drain="L_drain0")
    process(1, True, 25, 26, claim=True, dynoff=True, drain="L_drain1")
    a("s_branch L_dyn_loop")
    for sl in range(2):
        a.label(f"L_drain{sl}")
        p_soft(); a("s_waitcnt vmcnt(17)"); p_pv(VB[sl])
        a(f"s_cmp_eq_u32 s{64+(sl^1)}, 0\ns_cbranch_scc1 L_dyn_done")
        a("s_waitcnt vmcnt(8)"); p_qk_mfma(KB[sl^1]); p_soft(); a("s_waitcnt vmcnt(0)"); p_pv(VB[sl^1])
        if sl == 0: a("s_branch L_dyn_done")
    a.label("L_dyn_done")
stamp(4)
xreduce(9, 12, "v_add_f32")
a(f"""
s_lshl_b32 s8, s3, 10
v_and_b32 v6, 1, v2
v_lshlrev_b32 v6, 9, v6
v_lshl_add_u32 v6, v3, 7, v6
v_add_u32 v6, s8, v6
s_lshl_b32 s8, s3, 4
v_lshlrev_b32 v7, 3, v2
v_add_u32 v7, s8, v7
v_add_u32 v6, {L_AO}, v6
s_mov_b32 exec_lo, 0x00030003
s_mov_b32 exec_hi, 0x00030003
""")
for r in range(4):
    for e in range(0, 8, 2):
        a(f"ds_write2_b32 v6, v{O+4*e+r}, v{O+4*(e+1)+r} offset0:{r*8+e} offset1:{r*8+e+1}")
a(f"s_mov_b64 exec, 3\nds_write_b64 v7, v[8:9] offset:{L_AML}")
a("s_waitcnt lgkmcnt(0)\ns_barrier")
if DBG:
    stamp(5)
    a("s_cmp_lg_u32 s3, 0\ns_cbranch_scc1 L_end")
    a("s_waitcnt lgkmcnt(0) vmcnt(0)\ns_mov_b64 exec, 1")
    a("s_mov_b32 s52, s40\ns_mov_b32 s53, s41\ns_mov_b32 s54, 0x40000000\ns_mov_b32 s55, 0x20000")
    a(f"s_lshl_b32 s12, s2, 8\ns_add_u32 s12, s12, {0x200000}\nv_mov_b32 v4, 0")
    for k in range(6):
        a(f"v_mov_b32 v5, s{72+2*k}\nbuffer_store_dword v5, v4, {WS}, s12 offen offset:{k*4}")
a("s_endpgm")

a.label("L_aux2")
a("""
s_mov_b32 s68, 0x00ff00ff
s_cmp_eq_u32 s6, 7
s_cselect_b32 s68, -1, s68
s_mov_b32 s69, s68
""")
if OPT['noaux']: a("s_branch L_nobase")
a("s_cmp_lt_u32 s3, 2\ns_cbranch_scc1 L_hunit_done\ns_mov_b32 s63, s2\ns_cmp_eq_u32 s3, 2\ns_cbranch_scc1 L_hunit\ns_cmp_lt_u32 s2, 32\ns_cbranch_scc0 L_hunit_done\ns_add_u32 s63, s2, 256")
a.label("L_hunit")
h_item('s63', 's15', 's14')
a(f"""
s_mul_i32 s8, s15, {144*9216}
s_lshl_b32 s9, s14, 7
s_add_u32 s8, s8, s9
s_mov_b32 s44, s16
s_mov_b32 s45, s17
s_mov_b32 s46, 2304
s_mov_b32 s47, 0x20000
s_mov_b32 s48, s28
s_mov_b32 s49, s29
s_mov_b32 s50, {576*9216}
s_mov_b32 s51, 0x20000
""")
unit_addr(9216)
unit_run(9216, 's15')
a(f"""
s_mul_i32 s8, s15, 36864
s_lshl_b32 s9, s14, 8
s_add_u32 s8, s8, s9
s_add_u32 s8, s8, {W_H}
""")
unit_publish(18432)
a.label("L_hunit_done")
vm = VM()
a(f"""
v_mul_u32_u24 v8, {8*1152}, v3
v_lshl_add_u32 v8, v2, 4, v8
""")
for j in range(1, 8): a(f"v_add_u32 v{8+j}, {j*1152}, v8")
if OPT['xcontig']:
    a("v_and_b32 v8, 7, v2\nv_lshlrev_b32 v8, 4, v8\nv_lshl_add_u32 v8, v3, 7, v8")
    for j in range(1, 8): a(f"v_add_u32 v{8+j}, {j*512}, v8")
def issue_tile(tag, base, srd):
    for j in range(8):
        a(f"buffer_load_dwordx4 {vr(base+j*4)}, v{8+j}, s[{srd}:{srd+3}], s14 offen {WNT}"); vm.issue(tag)
a(f"""
s_lshl_b32 s10, s4, 8
s_lshl_b32 s11, s5, 7
s_add_u32 s10, s10, s11
s_lshl_b32 s11, s3, 5
s_add_u32 s10, s10, s11
s_mul_i32 s14, s10, 1152
s_lshl_b32 s11, s6, 7
s_add_u32 s14, s14, s11
s_mov_b32 s48, s24
s_mov_b32 s49, s25
s_mov_b32 s50, {4096*1152}
s_mov_b32 s51, 0x20000
s_mov_b64 exec, s[68:69]
""")
if OPT['xcontig']: a("s_mul_i32 s14, s2, 16384\ns_lshl_b32 s11, s3, 12\ns_add_u32 s14, s14, s11")
issue_tile('wo', 96, 48)
a(f"""
s_mul_i32 s10, s4, 288
s_mul_i32 s11, s5, 144
s_add_u32 s10, s10, s11
s_lshl_b32 s11, s3, 5
s_add_u32 s15, s10, s11
s_mul_i32 s14, s15, 1152
s_lshl_b32 s11, s6, 7
s_add_u32 s14, s14, s11
s_mov_b32 s64, s32
s_mov_b32 s65, s33
s_mov_b32 s66, {4608*1152}
s_mov_b32 s67, 0x20000
""")
if OPT['xcontig']: a("s_mul_i32 s14, s2, 20480\ns_lshl_b32 s11, s3, 12\ns_add_u32 s14, s14, s11")
issue_tile('w2', 128, 64)
a("s_cmp_eq_u32 s3, 0\ns_cbranch_scc0 L_no_x1")
a(f"s_mov_b64 exec, -1\nv_mov_b32 v16, 0x40000000\nv_cmp_gt_u32 vcc, 32, v0\ns_add_u32 s14, s14, {128*1152}\ns_mov_b64 exec, s[68:69]")
for j in range(8):
    a(f"v_cndmask_b32 v17, v16, v{8+j}, vcc\nbuffer_load_dwordx4 {vr(160+j*4)}, v17, s[64:67], s14 offen {WNT}")
a.label("L_no_x1")
a("s_mov_b64 exec, -1")
WX = 192
vm.wait('wo')
for i in range(4):
    for hlf, sel in enumerate((SEL_LO, SEL_HI)):
        for jj in range(4):
            a(f"v_perm_b32 v{WX + (2*i+hlf)*4 + jj}, v{96+(2*jj+1)*4+i}, v{96+(2*jj)*4+i}, {sel}")
for _ in range(OPT['hdelay']): a("s_sleep 127")
a("v_lshlrev_b32 v4, 4, v2")
def body():
    a("global_load_dword v30, v4, s[38:39] sc1\ns_waitcnt vmcnt(0)\nv_cmp_gt_u32 vcc, 16, v30")
spin("all", body, "s_cbranch_vccz", OPT["slowsleep"])
a(f"""
v_lshrrev_b32 v4, 5, v0
v_mul_u32_u24 v4, 18432, v4
v_and_b32 v5, 31, v0
v_lshl_add_u32 v4, v5, 2, v4
s_lshl_b32 s8, s15, 2
s_add_u32 s8, s8, {W_H}
s_add_u32 s9, s8, 36864
s_add_u32 s10, s8, {2*36864}
s_add_u32 s11, s8, {3*36864}
s_mov_b32 s48, s30
s_mov_b32 s49, s31
s_mov_b32 s50, 9216
s_mov_b32 s51, 0x20000
v_lshlrev_b32 v6, 1, v5
s_lshl_b32 s13, s15, 1
buffer_load_ushort v24, v6, s[48:51], s13 offen
buffer_load_ushort v25, v6, s[48:51], s13 offen offset:256
v_add_u32 v7, 512, v4
v_cmp_gt_u32 vcc, 16, v5
v_mov_b32 v26, 0x40000000
v_cndmask_b32 v7, v26, v7, vcc
s_cmp_eq_u32 s3, 0
s_cselect_b32 s13, 0, 0x40000000
v_add_u32 v7, s13, v7
""")
def body():
    for rg, so in enumerate(('s8', 's9', 's10', 's11')):
        a(f"buffer_load_dword v{16+rg}, v4, {WS}, {so} offen sc0 sc1")
    for rg, so in enumerate(('s8', 's9', 's10', 's11')):
        a(f"buffer_load_dword v{20+rg}, v7, {WS}, {so} offen sc0 sc1")
    a("s_waitcnt vmcnt(0)")
    anyinvalid(26, range(16, 24))
spin("h", body, "s_cbranch_vccz", OPT["slowsleep"])
def h_finish(p, b1, dst):
    a(f"""
v_add_f32 v{p}, v{p}, v{p+1}
v_add_f32 v{p+2}, v{p+2}, v{p+3}
v_add_f32 v{p}, v{p}, v{p+2}
v_lshlrev_b32 v{b1}, 16, v{b1}
v_cvt_pk_bf16_f32 v{p}, v{p}, v{p}
v_lshlrev_b32 v{p}, 16, v{p}
v_add_f32 v{p}, v{p}, v{b1}
v_cvt_pk_bf16_f32 v{p}, v{p}, v{p}
v_lshlrev_b32 v{p}, 16, v{p}
v_max_f32 v{p}, 0, v{p}
v_mul_f32 v{p}, v{p}, v{p}
v_cvt_pk_bf16_f32 v{dst}, v{p}, v{p}
""")
h_finish(16, 24, 26); h_finish(20, 25, 27)
a(f"""
s_lshl_b32 s13, s3, 9
s_add_u32 s13, s13, {L_OB}
v_lshl_add_u32 v6, v0, 1, s13
ds_write_b16 v6, v26
ds_write_b16 v6, v27 offset:128
v_and_b32 v7, 1, v2
v_lshlrev_b32 v7, 6, v7
v_lshl_add_u32 v7, v3, 4, v7
v_add_u32 v7, s13, v7
s_waitcnt lgkmcnt(0)
ds_read_b128 v[16:19], v7
ds_read_b128 v[20:23], v7 offset:128
s_waitcnt lgkmcnt(0)
""")
gemv_tile(128, 16, True)
a("s_cmp_eq_u32 s3, 0\ns_cbranch_scc0 L_no_x2")
gemv_tile(160, 20, False)
a.label("L_no_x2")
stamp(4)
a("s_cmp_lg_u32 s3, 1\ns_cbranch_scc1 L_nobase\ns_lshl_b32 s8, s6, 1\ns_cmp_lg_u32 s8, s4\ns_cbranch_scc1 L_nobase")
a(f"""
s_mov_b32 s64, s34
s_mov_b32 s65, s35
s_mov_b32 s66, 1152
s_mov_b32 s67, 0x20000
s_lshl_b32 s8, s6, 7
v_and_b32 v5, 31, v0
v_lshlrev_b32 v5, 3, v5
buffer_load_dwordx2 v[24:25], v5, s[64:67], s8 offen
s_mul_i32 s9, s5, 1152
s_add_u32 s8, s8, s9
s_mov_b32 s44, s16
s_mov_b32 s45, s17
s_mov_b32 s46, 2304
s_mov_b32 s47, 0x20000
buffer_load_dwordx2 v[26:27], v5, s[44:47], s8 offen
s_waitcnt vmcnt(0)
""")
for k in range(2):
    a(f"""
v_lshlrev_b32 v{28+2*k}, 16, v{24+k}
v_and_b32 v{29+2*k}, 0xffff0000, v{24+k}
v_lshlrev_b32 v46, 16, v{26+k}
v_and_b32 v47, 0xffff0000, v{26+k}
v_add_f32 v{28+2*k}, v{28+2*k}, v46
v_add_f32 v{29+2*k}, v{29+2*k}, v47
""")
a.label("L_nobase")
stamp(5)
a(f"""
v_lshrrev_b32 v4, 5, v0
v_lshlrev_b32 v5, 11, v4
v_lshlrev_b32 v4, 17, v4
v_and_b32 v6, 31, v0
v_lshl_add_u32 v4, v6, 2, v4
s_lshl_b32 s8, s4, 13
s_lshl_b32 s9, s5, 9
s_add_u32 s8, s8, s9
s_lshl_b32 s9, s3, 7
s_add_u32 s8, s8, s9
s_add_u32 s9, s8, 4096
s_lshl_b32 s10, s4, 7
s_lshl_b32 s11, s5, 6
s_add_u32 s10, s10, s11
s_add_u32 s10, s10, {W_ML}
s_barrier
""")
stamp(6)
a("s_cmp_lg_u32 s3, 0\ns_cbranch_scc1 L_l1")
a(f"""
v_lshlrev_b32 v6, 4, v0
v_lshrrev_b32 v7, 5, v0
v_lshlrev_b32 v7, 3, v7
""")
for w in range(4):
    a(f"ds_read_b128 {vr(96+4*w)}, v6 offset:{L_AO + w*1024}")
    a(f"ds_read_b64 v[{112+2*w}:{113+2*w}], v7 offset:{L_AML + w*16}")
a(f"""
s_lshl_b32 s12, s7, 13
s_lshl_b32 s13, s6, 10
s_add_u32 s12, s12, s13
s_lshl_b32 s13, s7, 7
s_lshl_b32 s14, s6, 3
s_add_u32 s13, s13, s14
s_add_u32 s13, s13, {W_ML}
v_lshlrev_b32 v7, 1, v0
s_waitcnt lgkmcnt(0)
v_max3_f32 v120, v112, v114, v116
v_max_f32 v120, v120, v118
""")
for w in range(4): a(f"v_sub_f32 v{122+w}, v{112+2*w}, v120")
for w in range(4): a(f"v_mul_f32 v{122+w}, {SC}, v{122+w}")
for w in range(4): a(f"v_exp_f32 v{122+w}, v{122+w}")
a("v_mul_f32 v121, v122, v113")
for k in range(4): a(f"v_mul_f32 v{128+k}, v122, v{96+k}")
for w in range(1, 4):
    a(f"v_fmac_f32 v121, v{122+w}, v{113+2*w}")
    for k in range(4): a(f"v_fmac_f32 v{128+k}, v{122+w}, v{96+4*w+k}")
for k in range(4): a(f"v_min_u32 v{128+k}, -2, v{128+k}")
a(f"""
v_min_u32 v120, -2, v120
v_min_u32 v121, -2, v121
buffer_store_dwordx4 v[128:131], v6, {WS}, s12 offen sc0 sc1
s_mov_b32 exec_lo, 1
s_mov_b32 exec_hi, 1
buffer_store_dwordx2 v[120:121], v7, {WS}, s13 offen sc0 sc1
s_mov_b64 exec, -1
""")
a.label("L_l1")
def body():
    for s_ in range(8):
        a(f"buffer_load_dword v{96+s_}, v4, {WS}, {'s8' if s_ < 4 else 's9'} offen offset:{(s_%4)*1024} sc0 sc1")
    for k in range(4):
        a(f"buffer_load_dwordx4 {vr(104+4*k)}, v5, {WS}, s10 offen offset:{k*16} sc0 sc1")
    a("s_waitcnt vmcnt(0)")
    anyinvalid(120, range(96, 120))
spin("l1", body, "s_cbranch_vccz")
stamp(7)
a("v_max3_f32 v120, v104, v106, v108\nv_max3_f32 v120, v120, v110, v112\nv_max3_f32 v120, v120, v114, v116\nv_max_f32 v120, v120, v118")
for s_ in range(8): a(f"v_sub_f32 v{122+s_}, v{104+2*s_}, v120")
for s_ in range(8): a(f"v_mul_f32 v{122+s_}, {SC}, v{122+s_}")
for s_ in range(8): a(f"v_exp_f32 v{122+s_}, v{122+s_}")
a("v_mul_f32 v121, v122, v105\nv_mul_f32 v130, v122, v96")
for s_ in range(1, 8):
    a(f"v_fmac_f32 v121, v{122+s_}, v{105+2*s_}\nv_fmac_f32 v130, v{122+s_}, v{96+s_}")
a(f"""
v_rcp_f32 v121, v121
s_lshl_b32 s12, s3, 9
s_add_u32 s12, s12, {L_OB}
v_lshl_add_u32 v6, v0, 1, s12
v_mul_f32 v130, v130, v121
v_cvt_pk_bf16_f32 v130, v130, v130
ds_write_b16 v6, v130
v_and_b32 v7, 1, v2
v_lshlrev_b32 v7, 6, v7
v_lshl_add_u32 v7, v3, 4, v7
v_add_u32 v7, s12, v7
s_waitcnt lgkmcnt(0)
ds_read_b128 v[132:135], v7
s_waitcnt lgkmcnt(0)
""")
for e in range(8):
    D = vr(O+4*e)
    a(f"v_mfma_f32_16x16x32_bf16 {D}, {vr(132)}, {vr(WX+e*4)}, {D}")
a(f"s_lshl_b32 s12, s3, 10\ns_add_u32 s12, s12, {L_YP}\nv_lshl_add_u32 v6, v2, 5, s12\ns_mov_b64 exec, 0xffff")
for b in range(2):
    for e in range(0, 8, 2):
        a(f"ds_write2_b32 v6, v{O+4*e+b}, v{O+4*(e+1)+b} offset0:{b*128+e} offset1:{b*128+e+1}")
a("s_mov_b64 exec, -1\ns_waitcnt lgkmcnt(0)\ns_barrier")
stamp(8)
a("s_cmp_eq_u32 s3, 1\ns_cbranch_scc1 L_final\ns_cmp_lg_u32 s3, 0\ns_cbranch_scc1 L_endaux")
a(f"""
v_lshlrev_b32 v6, 4, v0
""")
for w in range(4): a(f"ds_read_b128 {vr(96+4*w)}, v6 offset:{L_YP + w*1024}")
a(f"""
s_lshl_b32 s13, s6, 15
s_lshl_b32 s14, s4, 10
s_add_u32 s13, s13, s14
s_lshl_b32 s14, s5, 9
s_add_u32 s13, s13, s14
s_add_u32 s13, s13, {W_Y}
v_lshrrev_b32 v11, 5, v0
v_lshlrev_b32 v11, 14, v11
v_and_b32 v7, 31, v0
v_lshl_add_u32 v11, v7, 4, v11
s_mov_b32 s14, 0x0000ffff
s_cmp_eq_u32 s6, 7
s_cselect_b32 s14, -1, s14
s_waitcnt lgkmcnt(0)
""")
for k in range(4):
    a(f"v_add_f32 v{96+k}, v{96+k}, v{100+k}\nv_add_f32 v{104+k}, v{104+k}, v{108+k}")
for k in range(4):
    a(f"v_add_f32 v{96+k}, v{96+k}, v{104+k}")
for k in range(4): a(f"v_min_u32 v{96+k}, -2, v{96+k}")
a(f"""
s_mov_b32 exec_lo, s14
s_mov_b32 exec_hi, s14
buffer_store_dwordx4 v[96:99], v11, {WS}, s13 offen sc0 sc1
s_branch L_endaux
""")
a.label("L_final")
a(f"""
s_lshl_b32 s8, s6, 1
s_cmp_lg_u32 s8, s4
s_cbranch_scc1 L_endaux
s_lshl_b32 s8, s6, 15
s_lshl_b32 s9, s5, 14
s_add_u32 s8, s8, s9
s_add_u32 s8, s8, {W_Y}
s_add_u32 s9, s8, 4096
v_lshrrev_b32 v4, 5, v0
v_lshlrev_b32 v4, 13, v4
v_and_b32 v5, 31, v0
v_lshl_add_u32 v4, v5, 4, v4
s_mov_b32 s14, 0x0000ffff
s_cmp_eq_u32 s6, 7
s_cselect_b32 s14, -1, s14
s_mov_b32 exec_lo, s14
s_mov_b32 exec_hi, s14
""")
def body():
    for k in range(16):
        a(f"buffer_load_dwordx4 {vr(96+4*k)}, v4, {WS}, {'s8' if k < 8 else 's9'} offen offset:{(k%8)*512} sc0 sc1")
    a("s_waitcnt vmcnt(0)")
    anyinvalid(160, range(96, 160))
spin("fin", body, "s_cbranch_vccz")
for st in (1, 2, 4, 8):
    for k in range(0, 16, 2*st):
        for c in range(4):
            a(f"v_add_f32 v{96+4*k+c}, v{96+4*k+c}, v{96+4*(k+st)+c}")
a("s_mov_b64 exec, -1")
for c in range(4): xswap32(96+c, 160+c, "v_add_f32")
for c in range(4): a(f"v_add_f32 v{96+c}, v{96+c}, v{28+c}")
a(f"""
v_cvt_pk_bf16_f32 v96, v96, v97
v_cvt_pk_bf16_f32 v97, v98, v99
s_mov_b32 s64, s36
s_mov_b32 s65, s37
s_mov_b32 s66, 2304
s_mov_b32 s67, 0x20000
s_lshl_b32 s8, s6, 7
s_mul_i32 s9, s5, 1152
s_add_u32 s8, s8, s9
v_lshlrev_b32 v5, 3, v5
s_mov_b32 exec_lo, s14
s_mov_b32 exec_hi, 0
buffer_store_dwordx2 v[96:97], v5, s[64:67], s8 offen
""")
a.label("L_endaux")
if DBG:
    stamp(9)
    a("s_waitcnt lgkmcnt(0) vmcnt(0)\ns_mov_b64 exec, 1")
    a(f"s_lshl_b32 s12, s2, 9\ns_lshl_b32 s13, s3, 6\ns_add_u32 s12, s12, s13\ns_add_u32 s12, s12, {0x280000}\nv_mov_b32 v4, 0")
    for k in range(10):
        a(f"v_mov_b32 v5, s{72+2*k}\nbuffer_store_dword v5, v4, {WS}, s12 offen offset:{k*4}")
a.label("L_end")
a("s_endpgm")

ref = open('cdna_kernels/' + NAME + '.s.ref').read().split('\n')
hdr = [l for l in ref if l.startswith(';') and '@launch' not in l]
out = "\n".join(hdr) + f"\n; @launch grid=(256,1,1) block=(512,1,1) lds={LDS_BYTES}\n"
out += f""".amdgcn_target "amdgcn-amd-amdhsa--gfx950"
.text
.globl {NAME}_kernel
.p2align 8
.type {NAME}_kernel,@function
{NAME}_kernel:
""" + a.text() + f""".section .rodata,"a"
.p2align 6
.amdhsa_kernel {NAME}_kernel
  .amdhsa_next_free_vgpr 256
  .amdhsa_next_free_sgpr 96
  .amdhsa_accum_offset 256
  .amdhsa_group_segment_fixed_size 0
  .amdhsa_kernarg_size 104
  .amdhsa_user_sgpr_count 2
  .amdhsa_user_sgpr_kernarg_segment_ptr 1
  .amdhsa_system_sgpr_workgroup_id_x 1
.end_amdhsa_kernel
"""
open(sys.argv[1], 'w').write(out)
print("lines", len(a.lines), "nops", a.nops)
```

```python
import sys, struct, math
from asmlib import *
NAME = "parallel_sum__gqa_block_cached__dense_activation_squared_relu__decode"
def f32(x): return struct.unpack('<I', struct.pack('<f', x))[0]
CSCALE = f32((128 ** -0.5) * math.log2(math.e))
OPT = dict(nt='nt', wnt='nt', dbg=0, spin=0x10000, hold=1, slowsleep=16, dyn=0, sc='sc0_sc1', rot=1, early=0, hdelay=3, nofam=0, holdx=0)
for arg in sys.argv[2:]:
    k, v = arg.split('='); assert k in OPT, k; OPT[k] = v if not v.lstrip('-').isdigit() else int(v)
NT = OPT['nt']; WNT = OPT['wnt']; DBG = OPT['dbg']; SPIN = OPT['spin']; SCB = OPT['sc'].replace('_', ' ')
L_Q = 0x0000
L_FLAG = 0x0200
L_YP = 0x0400
L_AO = 0x1400
L_AML = 0x2400
L_OB = 0x2500
L_XN = 0x2D00
LDS_BYTES = 0x5D00
W_O = 0; W_ML = 0x40000; W_CTR = 0x44000; W_Q = 0x48000; W_H = 0x68000; W_Y = 0x90000
a = Asm()
class VM:
    def __init__(s): s.q = []
    def issue(s, tag): s.q.append(tag)
    def wait(s, tag):
        idx = max(i for i, t in enumerate(s.q) if t == tag)
        n = len(s.q) - 1 - idx
        assert n <= 63
        a(f"s_waitcnt vmcnt({n})"); s.q = s.q[idx+1:]
def stamp(k):
    if DBG: a(f"s_memrealtime s[{72+2*k}:{73+2*k}]")
def vr(b, n=4): return f"v[{b}:{b+n-1}]"
S0, S1, P, XA, XB, O = 32, 36, 40, 48, 56, 64
Q = 16
KB = [96, 128]; VB = [160, 192]
SEL_LO, SEL_HI, SC = 's59', 's60', 's58'
WS = 's[52:55]'
CS = 's61'
def xswap16(v, t, op):
    a(f"v_mov_b32 v{t}, v{v}\nv_permlane16_swap_b32 v{v}, v{t}\n{op} v{v}, v{v}, v{t}")
def xswap32(v, t, op):
    a(f"v_mov_b32 v{t}, v{v}\nv_permlane32_swap_b32 v{v}, v{t}\n{op} v{v}, v{v}, v{t}")
def xreduce(v, t, op): xswap16(v, t, op); xswap32(v, t, op)
def rowreduce(v, op):
    for m in ("quad_perm:[1,0,3,2]", "quad_perm:[2,3,0,1]", "row_half_mirror", "row_mirror"):
        a(f"{op}_dpp v{v}, v{v}, v{v} {m} row_mask:0xf bank_mask:0xf")
def perm_mfma(base, fn):
    for i in range(4):
        X = XA if i % 2 == 0 else XB
        for jj in range(4):
            a(f"v_perm_b32 v{X+jj}, v{base+(2*jj+1)*4+i}, v{base+(2*jj)*4+i}, {SEL_LO}")
        for jj in range(4):
            a(f"v_perm_b32 v{X+4+jj}, v{base+(2*jj+1)*4+i}, v{base+(2*jj)*4+i}, {SEL_HI}")
        for hlf in range(2): fn(2*i+hlf, X+4*hlf)
def gemv_tile(base, A, first):
    perm_mfma(base, lambda e, X: a(f"v_mfma_f32_16x16x32_bf16 {vr(O+e*4)}, {vr(A)}, {vr(X)}, {'0' if first else vr(O+e*4)}"))
uid = [0]
def spin(name, body, okcond_branch, sleep=1):
    a(f"s_mov_b32 s12, {SPIN}")
    a.label(f"L_{name}_poll")
    body()
    a(f"{okcond_branch} L_{name}_ok")
    a(f"s_sleep {sleep}\ns_sub_u32 s12, s12, 1\ns_cmp_lg_u32 s12, 0\ns_cbranch_scc1 L_{name}_poll")
    a.label(f"L_{name}_ok")
def anyinvalid(dst, regs):
    regs = list(regs)
    a(f"v_max3_u32 v{dst}, v{regs[0]}, v{regs[1]}, v{regs[2]}")
    rest = regs[3:]
    while len(rest) >= 2:
        a(f"v_max3_u32 v{dst}, v{dst}, v{rest[0]}, v{rest[1]}"); rest = rest[2:]
    if rest: a(f"v_max_u32 v{dst}, v{dst}, v{rest[0]}")
    a(f"v_cmp_eq_u32 vcc, -1, v{dst}")

a(f"""
s_cmp_ge_u32 s2, 256
s_cbranch_scc1 L_end
s_load_dwordx16 s[16:31], s[0:1], 0
s_load_dwordx8 s[32:39], s[0:1], 64
s_load_dwordx2 s[40:41], s[0:1], 96
v_lshrrev_b32 v1, 6, v0
v_and_b32 v0, 63, v0
v_readfirstlane_b32 s3, v1
s_lshr_b32 s7, s2, 3
s_and_b32 s6, s2, 7
s_and_b32 s4, s7, 15
s_lshr_b32 s5, s7, 4
v_and_b32 v2, 15, v0
v_lshrrev_b32 v3, 4, v0
{"s_memrealtime s[72:73]" if DBG else ""}
s_mov_b32 {SEL_LO}, 0x05040100
s_mov_b32 {SEL_HI}, 0x07060302
s_mov_b32 {SC}, {CSCALE:#x}
s_cmp_ge_u32 s3, 4
s_cbranch_scc1 L_aux
""")
a(f"""
v_lshlrev_b32 v4, 8, v2
v_lshl_add_u32 v4, v3, 4, v4
v_lshlrev_b32 v5, 10, v3
v_lshl_add_u32 v5, v2, 4, v5
s_lshl_b32 s8, s7, 23
s_lshl_b32 s9, s6, 20
s_lshl_b32 s56, s3, 13
s_add_u32 s56, s56, s9
s_add_u32 s57, s56, 4096
s_mov_b32 s46, 0x800000
s_mov_b32 s47, 0x20000
s_mov_b32 s50, 0x800000
s_mov_b32 s51, 0x20000
s_mov_b32 s54, 0x40000000
s_mov_b32 s55, 0x20000
s_lshl_b32 s62, s7, 8
s_add_u32 s62, s62, {W_CTR}
v_mov_b32 v226, 0
s_waitcnt lgkmcnt(0)
s_mov_b32 s52, s40
s_mov_b32 s53, s41
s_add_u32 s44, s18, s8
s_addc_u32 s45, s19, 0
s_add_u32 s48, s20, s8
s_addc_u32 s49, s21, 0
s_barrier
s_barrier
""")
def issueK(slot):
    for j in range(8):
        t, jj = j >> 2, j & 3
        a(f"buffer_load_dwordx4 {vr(KB[slot]+(t*4+jj)*4)}, v4, s[44:47], s{56+t} offen offset:{jj*64} {NT}")
def issueV(slot):
    for j in range(8):
        t, r = j >> 2, j & 3
        a(f"buffer_load_dwordx4 {vr(VB[slot]+(t*4+r)*4)}, v5, s[48:51], s{56+t} offen offset:{r*256} {NT}")
def advance():
    a("s_add_u32 s56, s56, 0x8000\ns_add_u32 s57, s57, 0x8000")
for slot in range(2):
    issueK(slot); issueV(slot); advance()
a("s_branch L_att_main")

def h_item(sid, srg, slc):
    a(f"""
s_cmp_ge_u32 {sid}, 72
s_cselect_b32 {srg}, 1, 0
s_cmp_ge_u32 {sid}, 144
s_cselect_b32 {srg}, 2, {srg}
s_cmp_ge_u32 {sid}, 216
s_cselect_b32 {srg}, 3, {srg}
s_mul_i32 {slc}, {srg}, 72
s_sub_u32 {slc}, {sid}, {slc}
""")
TV = 36
R_WO, R_W2, R_X = 224, 192, 128
def tile_voffs():
    a(f"v_mul_u32_u24 v{TV}, {8*1152}, v3\nv_lshl_add_u32 v{TV}, v2, 4, v{TV}")
    for j in range(1, 8): a(f"v_add_u32 v{TV+j}, {j*1152}, v{TV}")
def tile_soffs():
    a(f"""
s_lshl_b32 s10, s4, 8
s_lshl_b32 s11, s5, 7
s_add_u32 s10, s10, s11
s_lshl_b32 s11, s3, 5
s_add_u32 s10, s10, s11
s_mul_i32 s66, s10, 1152
s_lshl_b32 s11, {CS}, 7
s_add_u32 s66, s66, s11
s_mul_i32 s10, s4, 288
s_mul_i32 s14, s5, 144
s_add_u32 s10, s10, s14
s_lshl_b32 s14, s3, 5
s_add_u32 s63, s10, s14
s_mul_i32 s67, s63, 1152
s_add_u32 s67, s67, s11
s_mov_b32 s68, 0x00ff00ff
s_cmp_eq_u32 {CS}, 7
s_cselect_b32 s68, -1, s68
s_mov_b32 s69, s68
s_mov_b32 s94, {4096*1152}
s_mov_b32 s95, 0x20000
s_mov_b32 s98, {4608*1152}
s_mov_b32 s99, 0x20000
""")
def tile_ptrs():
    a("s_mov_b32 s92, s24\ns_mov_b32 s93, s25\ns_mov_b32 s96, s32\ns_mov_b32 s97, s33")
def tile_issue(vm, extra):
    a("s_mov_b64 exec, s[68:69]")
    for j in range(8):
        a(f"buffer_load_dwordx4 {vr(R_WO+j*4)}, v{TV+j}, s[92:95], s66 offen {WNT}"); vm.issue('wo')
    for j in range(8):
        a(f"buffer_load_dwordx4 {vr(R_W2+j*4)}, v{TV+j}, s[96:99], s67 offen {WNT}"); vm.issue('w2')
    if extra:
        a(f"s_mov_b64 exec, -1\nv_mov_b32 v44, 0x40000000\nv_cmp_gt_u32 vcc, 32, v0\ns_add_u32 s14, s67, {128*1152}\ns_mov_b64 exec, s[68:69]")
        for j in range(8):
            a(f"v_cndmask_b32 v45, v44, v{TV+j}, vcc\nbuffer_load_dwordx4 {vr(R_X+j*4)}, v45, s[96:99], s14 offen {WNT}"); vm.issue('wx')
    a("s_mov_b64 exec, -1")
a.label("L_aux")
a(f"""
s_sub_u32 s3, s3, 4
s_lshl_b32 s62, s5, 3
s_add_u32 s62, s62, s6
s_add_u32 {CS}, s6, {"s4" if OPT['rot'] else "0"}
s_and_b32 {CS}, {CS}, 7
s_lshl_b32 s64, {CS}, 5
s_add_u32 s64, s64, s7
s_add_u32 s65, s64, 224
""")
tile_voffs(); tile_soffs()
a("s_cmp_eq_u32 s3, 1\ns_cbranch_scc1 L_qunit\ns_setprio 2\ns_cmp_lg_u32 s3, 0\ns_cbranch_scc1 L_aux23")
a(f"""
v_mov_b32 v4, 0
v_mov_b32 v5, {L_FLAG}
ds_write_b32 v5, v4
v_mov_b32 v24, -1
v_mov_b32 v25, -1
v_mov_b32 v26, -1
v_mov_b32 v27, -1
""")
h_item('s64', 's10', 's11')
a(f"""
s_mul_i32 s10, s10, 36864
s_lshl_b32 s11, s11, 8
s_add_u32 s10, s10, s11
s_add_u32 s10, s10, {W_H}
""")
h_item('s65', 's11', 's13')
a(f"""
s_mul_i32 s11, s11, 36864
s_lshl_b32 s13, s13, 8
s_add_u32 s11, s11, s13
s_add_u32 s11, s11, {W_H}
s_and_b32 s8, s62, 3
s_lshl_b32 s8, s8, 8
s_lshr_b32 s9, s62, 2
s_lshl_b32 s9, s9, 10
s_add_u32 s8, s8, s9
s_lshl_b32 s9, s4, 13
s_add_u32 s8, s8, s9
s_add_u32 s8, s8, {W_Q}
v_and_b32 v6, 1, v3
v_lshlrev_b32 v7, 4, v2
v_lshl_add_u32 v8, v6, 12, v7
v_add_u32 v8, s8, v8
v_mul_u32_u24 v9, 18432, v6
v_add_u32 v9, v9, v7
v_add_u32 v10, s11, v9
v_add_u32 v9, s10, v9
v_cmp_gt_u32 vcc, 32, v0
v_cndmask_b32 v9, v9, v8, vcc
s_lshl_b32 s13, {CS}, 15
s_lshl_b32 s14, s4, 10
s_add_u32 s13, s13, s14
s_lshl_b32 s14, s5, 9
s_add_u32 s13, s13, s14
s_add_u32 s13, s13, {W_Y}
v_lshrrev_b32 v11, 5, v0
v_lshlrev_b32 v11, 14, v11
v_and_b32 v6, 31, v0
v_lshl_add_u32 v11, v6, 4, v11
s_lshl_b32 s8, s7, 13
s_lshl_b32 s9, s6, 10
s_add_u32 s8, s8, s9
v_lshlrev_b32 v12, 4, v0
s_lshl_b32 s9, s7, 7
s_lshl_b32 s14, s6, 3
s_add_u32 s9, s9, s14
s_add_u32 s9, s9, {W_ML}
v_lshlrev_b32 v13, 6, v0
s_mov_b32 s70, -1
s_cmp_eq_u32 {CS}, 7
s_cselect_b32 s70, 0, s70
s_mov_b32 s54, 0x40000000
s_mov_b32 s55, 0x20000
s_waitcnt lgkmcnt(0)
s_mov_b32 s52, s40
s_mov_b32 s53, s41
s_mov_b32 exec_hi, s70
buffer_store_dwordx4 v[24:27], v9, {WS}, 0 offen {SCB}
s_mov_b64 exec, -1
buffer_store_dwordx4 v[24:27], v12, {WS}, s8 offen {SCB}
buffer_store_dwordx4 v[24:27], v11, {WS}, s13 offen {SCB}
s_mov_b64 exec, 3
buffer_store_dwordx2 v[24:25], v13, {WS}, s9 offen {SCB}
s_cmp_lg_u32 s6, 0
s_cbranch_scc1 L_noctr
s_mov_b64 exec, 1
v_mov_b32 v28, 0
s_lshl_b32 s14, s7, 8
s_add_u32 s14, s14, {W_CTR}
buffer_store_dword v28, v28, {WS}, s14 offen {SCB}
L_noctr:
s_cmp_lt_u32 {CS}, 2
s_cbranch_scc0 L_noh2reset
s_mov_b32 exec_hi, 0
s_mov_b32 exec_lo, -1
buffer_store_dwordx4 v[24:27], v10, {WS}, 0 offen {SCB}
""")
a.label("L_noh2reset")
a("s_mov_b64 exec, -1")
tile_ptrs()
a("s_barrier")
vm = VM()
if OPT['early']:
    tile_issue(vm, True)
    nyoung = len(vm.q)
else: nyoung = 0
a(f"""
{"s_barrier" if OPT['holdx'] else ""}
s_mov_b64 exec, 1
s_lshl_b32 s11, s4, 4
v_mov_b32 v14, s11
v_mov_b32 v15, 1
s_waitcnt vmcnt({nyoung})
global_atomic_add v14, v15, s[38:39] sc1
ds_write_b32 v5, v15
{"s_barrier" if not OPT['holdx'] else ""}
""")
stamp(1)
def body():
    a("global_load_dword v16, v14, s[38:39] sc1\ns_waitcnt vmcnt(0)\nv_readfirstlane_b32 s8, v16\ns_cmp_ge_u32 s8, 16")
if not OPT['nofam']: spin("fam", body, "s_cbranch_scc1")
stamp(2)
a(f"""
s_mov_b64 exec, -1
s_lshl_b32 s8, s4, 13
s_lshl_b32 s9, s5, 12
s_add_u32 s8, s8, s9
s_add_u32 s8, s8, {W_Q}
""")
def body():
    for rg in range(4):
        a(f"buffer_load_dwordx4 {vr(16+4*rg)}, v12, {WS}, s8 offen offset:{rg*1024} {SCB}")
    a("s_waitcnt vmcnt(0)")
    anyinvalid(32, range(16, 32))
spin("q", body, "s_cbranch_vccz")
for k in range(4):
    a(f"v_add_f32 v{16+k}, v{16+k}, v{20+k}\nv_add_f32 v{24+k}, v{24+k}, v{28+k}\nv_add_f32 v{16+k}, v{16+k}, v{24+k}")
a(f"""
v_cvt_pk_bf16_f32 v16, v16, v17
v_cvt_pk_bf16_f32 v17, v18, v19
v_lshlrev_b32 v20, 3, v0
ds_write_b64 v20, v[16:17] offset:{L_Q}
s_waitcnt lgkmcnt(0)
""")
stamp(3)
a("s_barrier\ns_branch L_aux2")

T0, T1, T2, T3, T4, T5, T6, T7 = 46, 47, 48, 49, 50, 51, 52, 53
def layernorm(vm):
    vm.wait('x')
    for k in range(10):
        a(f"v_lshlrev_b32 v{26+2*k}, 16, v{16+k}\nv_and_b32 v{27+2*k}, 0xffff0000, v{16+k}")
    a(f"v_add_f32 v{T0}, v26, v27\nv_add_f32 v{T1}, v28, v29")
    for k in range(4, 20, 2): a(f"v_add_f32 v{T0}, v{T0}, v{26+k}\nv_add_f32 v{T1}, v{T1}, v{27+k}")
    a(f"v_add_f32 v{T0}, v{T0}, v{T1}")
    rowreduce(T0, "v_add_f32"); xswap16(T0, T1, "v_add_f32")
    a(f"v_mul_f32 v{T0}, {f32(1.0/576):#x}, v{T0}")
    a(f"v_and_b32 v{T1}, 16, v0\nv_cmp_eq_u32 vcc, 0, v{T1}\nv_mov_b32 v{T2}, 0\nv_mov_b32 v{T4}, 0")
    for k in range(0, 20, 2):
        a(f"v_sub_f32 v{T3}, v{26+k}, v{T0}\nv_sub_f32 v{T5}, v{27+k}, v{T0}")
        if k >= 16: a(f"v_cndmask_b32 v{T3}, 0, v{T3}, vcc\nv_cndmask_b32 v{T5}, 0, v{T5}, vcc")
        a(f"v_fmac_f32 v{T2}, v{T3}, v{T3}\nv_fmac_f32 v{T4}, v{T5}, v{T5}")
    a(f"v_add_f32 v{T2}, v{T2}, v{T4}")
    rowreduce(T2, "v_add_f32"); xswap16(T2, T1, "v_add_f32")
    a(f"""
v_mul_f32 v{T2}, {f32(1.0/576):#x}, v{T2}
v_cvt_pk_bf16_f32 v{T1}, v{T0}, v{T2}
v_lshlrev_b32 v{T0}, 16, v{T1}
v_and_b32 v{T2}, 0xffff0000, v{T1}
v_add_f32 v{T2}, {f32(1e-5):#x}, v{T2}
v_cvt_pk_bf16_f32 v{T2}, v{T2}, v{T2}
v_lshlrev_b32 v{T2}, 16, v{T2}
v_sqrt_f32 v{T2}, v{T2}
v_cvt_pk_bf16_f32 v{T2}, v{T2}, v{T2}
v_lshlrev_b32 v{T2}, 16, v{T2}
v_rcp_f32 v{T2}, v{T2}
""")
    for k in range(10):
        t0, t1 = (T4, T5) if k % 2 == 0 else (T6, T7)
        a(f"v_sub_f32 v{t0}, v{26+2*k}, v{T0}\nv_sub_f32 v{t1}, v{27+2*k}, v{T0}")
        a(f"v_cvt_pk_bf16_f32 v{t0}, v{t0}, v{t1}")
        a(f"v_and_b32 v{t1}, 0xffff0000, v{t0}\nv_lshlrev_b32 v{t0}, 16, v{t0}")
        a(f"v_mul_f32 v{t0}, v{t0}, v{T2}\nv_mul_f32 v{t1}, v{t1}, v{T2}")
        a(f"v_cvt_pk_bf16_f32 v{16+k}, v{t0}, v{t1}")
    a(f"""
s_mul_i32 s13, s3, 3072
s_add_u32 s13, s13, {L_XN}
v_lshrrev_b32 v{T6}, 5, v0
v_mul_u32_u24 v{T6}, 1536, v{T6}
v_and_b32 v{T7}, 31, v0
v_lshl_add_u32 v{T6}, v{T7}, 3, v{T6}
v_add_u32 v{T6}, s13, v{T6}
""")
    for i in range(5): a(f"ds_write_b64 v{T6}, v[{16+2*i}:{17+2*i}] offset:{i*256}")
RING = [96, 128, 160]
def unit_addr(stride):
    a(f"""
v_lshrrev_b32 v6, 5, v0
v_mul_u32_u24 v6, 1152, v6
v_and_b32 v7, 31, v0
v_lshl_add_u32 v6, v7, 3, v6
v_add_u32 v7, 0x400, v6
v_and_b32 v8, 16, v0
v_cmp_eq_u32 vcc, 0, v8
v_mov_b32 v9, 0x40000000
v_cndmask_b32 v7, v9, v7, vcc
v_lshrrev_b32 v8, 3, v2
v_mul_u32_u24 v8, 72, v8
v_lshl_add_u32 v8, v3, 3, v8
v_mul_u32_u24 v8, {stride}, v8
v_and_b32 v10, 7, v2
v_lshl_add_u32 v8, v10, 4, v8
v_add_u32 v8, s8, v8
v_cmp_gt_u32 vcc, 16, v0
v_cndmask_b32 v5, v9, v8, vcc
""")
def unit_issue(vm, stride):
    for i in range(4):
        a(f"buffer_load_dwordx2 v[{16+2*i}:{17+2*i}], v6, s[44:47], 0 offen offset:{i*256}"); vm.issue('x')
    a("buffer_load_dwordx2 v[24:25], v7, s[44:47], 0 offen"); vm.issue('x')
    for j in range(1, 8): a(f"v_add_u32 v{8+j}, {stride}, v{8+j-1}")
    for st in range(3):
        if st == 2:
            a("v_mov_b32 v8, v5")
            for j in range(1, 8): a(f"v_add_u32 v{8+j}, {stride}, v{8+j-1}")
        a(f"s_mov_b32 s10, {st*32*stride}")
        for j in range(8):
            a(f"buffer_load_dwordx4 {vr(RING[st]+j*4)}, v{8+j}, s[48:51], s10 offen {WNT}"); vm.issue(('w', st))
def unit_compute(vm, srg, holdbar=False, st2=None):
    if holdbar and OPT['holdx'] == 2: a("s_barrier")
    if holdbar and OPT['holdx'] == 1:
        vm.wait('x'); vm.q.insert(0, 'x'); a("s_barrier")
    layernorm(vm)
    a(f"""
v_and_b32 v{T6}, 1, v2
v_mul_u32_u24 v{T6}, 1536, v{T6}
v_bfe_u32 v{T7}, v2, 1, 1
v_mul_u32_u24 v{T7}, 144, v{T7}
v_add_u32 v{T6}, v{T6}, v{T7}
v_lshl_add_u32 v{T6}, v3, 4, v{T6}
s_mul_i32 s9, {srg}, 288
s_add_u32 s9, s9, s13
v_add_u32 v{T6}, s9, v{T6}
s_waitcnt lgkmcnt(0)
""")
    for st in range(3): a(f"ds_read_b128 {vr(16+4*st)}, v{T6} offset:{st*64}")
    if st2 is not None: stamp(st2)
    a("s_waitcnt lgkmcnt(0)")
    for st in range(3):
        vm.wait(('w', st))
        if st == 2 and holdbar and OPT['holdx'] == 0: a("s_barrier")
        gemv_tile(RING[st], 16+4*st, st == 0)
    a("v_and_b32 v32, 8, v2\nv_cmp_ne_u32 vcc, 0, v32")
    for b in range(2):
        for e in range(8):
            a(f"v_cndmask_b32 v{16+b*8+e}, v{O+4*e+b}, v{O+4*e+2+b}, vcc")
    for k in range(16):
        a(f"v_add_f32_dpp v{16+k}, v{16+k}, v{16+k} row_ror:8 row_mask:0xf bank_mask:0xf")
    for k in range(16): a(f"v_min_u32 v{16+k}, -2, v{16+k}")
def unit_publish(bstride):
    a(f"""
s_add_u32 s9, s8, {bstride}
v_lshlrev_b32 v32, 5, v2
s_mov_b64 exec, 0xff
buffer_store_dwordx4 v[16:19], v32, {WS}, s8 offen {SCB}
buffer_store_dwordx4 v[20:23], v32, {WS}, s8 offen offset:16 {SCB}
buffer_store_dwordx4 v[24:27], v32, {WS}, s9 offen {SCB}
buffer_store_dwordx4 v[28:31], v32, {WS}, s9 offen offset:16 {SCB}
s_mov_b64 exec, -1
""")

a.label("L_qunit")
a(f"""
s_setprio 3
s_lshr_b32 s15, s62, 2
s_mul_i32 s9, s15, {144*8192}
s_lshl_b32 s8, s4, 9
s_add_u32 s8, s8, s9
s_and_b32 s9, s62, 3
s_lshl_b32 s9, s9, 7
s_add_u32 s8, s8, s9
""")
unit_addr(8192)
a(f"""
s_mov_b32 s46, 2304
s_mov_b32 s47, 0x20000
s_mov_b32 s50, {576*8192}
s_mov_b32 s51, 0x20000
s_mov_b32 s54, 0x40000000
s_mov_b32 s55, 0x20000
s_waitcnt lgkmcnt(0)
s_mov_b32 s44, s16
s_mov_b32 s45, s17
s_mov_b32 s48, s22
s_mov_b32 s49, s23
s_mov_b32 s52, s40
s_mov_b32 s53, s41
""")
tile_ptrs()
a("s_barrier")
vm = VM()
unit_issue(vm, 8192)
if OPT['early']: tile_issue(vm, False)
stamp(1)
unit_compute(vm, 's15', holdbar=True, st2=2)
def body():
    a(f"v_mov_b32 v33, {L_FLAG}\nds_read_b32 v34, v33\ns_waitcnt lgkmcnt(0)\nv_readfirstlane_b32 s8, v34\ns_cmp_eq_u32 s8, 1")
spin("rst1", body, "s_cbranch_scc1")
a(f"""
s_and_b32 s8, s62, 3
s_lshl_b32 s8, s8, 8
s_lshl_b32 s9, s15, 10
s_add_u32 s8, s8, s9
s_lshl_b32 s9, s4, 13
s_add_u32 s8, s8, s9
s_add_u32 s8, s8, {W_Q}
""")
unit_publish(4096)
stamp(3)
a("s_barrier\ns_branch L_aux2")

a.label("L_aux23")
a(f"""
s_mov_b32 s71, 0
s_cmp_eq_u32 s3, 2
s_cbranch_scc0 L_aux3sel
s_cmp_lt_u32 {CS}, 7
s_cselect_b32 s71, 1, 0
s_branch L_auxsel_done
""")
a.label("L_aux3sel")
a(f"s_mov_b32 s64, s65\ns_cmp_lt_u32 {CS}, 2\ns_cselect_b32 s71, 1, 0")
a.label("L_auxsel_done")
h_item('s64', 's15', 's70')
a(f"""
s_mul_i32 s8, s15, {144*9216}
s_lshl_b32 s9, s70, 7
s_add_u32 s8, s8, s9
""")
unit_addr(9216)
a(f"""
s_mov_b32 s46, 2304
s_mov_b32 s47, 0x20000
s_mov_b32 s50, {576*9216}
s_cmp_eq_u32 s71, 0
s_cselect_b32 s50, 0, s50
s_cselect_b32 s46, 0, s46
s_mov_b32 s51, 0x20000
s_mov_b32 s54, 0x40000000
s_mov_b32 s55, 0x20000
s_waitcnt lgkmcnt(0)
s_mov_b32 s44, s16
s_mov_b32 s45, s17
s_mov_b32 s48, s28
s_mov_b32 s49, s29
s_mov_b32 s52, s40
s_mov_b32 s53, s41
""")
tile_ptrs()
a("s_barrier")
vm23 = VM()
unit_issue(vm23, 9216)
if OPT['early']: tile_issue(vm23, False)
a("s_barrier\ns_barrier")
a("s_cmp_eq_u32 s71, 0\ns_cbranch_scc1 L_aux2")
unit_compute(vm23, 's15')
a(f"""
s_mul_i32 s8, s15, 36864
s_lshl_b32 s9, s70, 8
s_add_u32 s8, s8, s9
s_add_u32 s8, s8, {W_H}
""")
unit_publish(18432)
a("s_branch L_aux2")

a.label("L_att_main")
stamp(1)
a("s_barrier")
stamp(2)
a(f"""
v_and_b32 v6, 1, v2
v_lshlrev_b32 v6, 8, v6
v_lshl_add_u32 v6, v3, 4, v6
""")
for jj in range(4): a(f"ds_read_b128 {vr(Q+jj*4)}, v6 offset:{L_Q+jj*64}")
for k in range(32): a(f"v_mov_b32 v{O+k}, 0")
a("v_mov_b32 v8, 0xff800000\nv_mov_b32 v9, 0\nv_mov_b32 v10, 0\ns_waitcnt lgkmcnt(0)")
def p_qk_mfma(K):
    for jj in range(4):
        for t in range(2):
            D = vr((S0, S1)[t])
            a(f"v_mfma_f32_16x16x32_bf16 {D}, {vr(K+(t*4+jj)*4)}, {vr(Q+jj*4)}, {'0' if jj == 0 else D}")
def p_soft():
    uid[0] += 1
    a(f"v_max3_f32 v11, v{S0}, v{S0+1}, v{S0+2}")
    a(f"v_max3_f32 v11, v11, v{S0+3}, v{S1}")
    a(f"v_max3_f32 v11, v11, v{S1+1}, v{S1+2}")
    a(f"v_max3_f32 v11, v11, v{S1+3}, v8")
    xreduce(11, 12, "v_max_f32")
    a(f"v_cmp_gt_f32 vcc, v11, v8")
    a(f"s_cbranch_vccz L_nors{uid[0]}")
    a(f"v_sub_f32 v12, v8, v11\nv_mul_f32 v12, {SC}, v12\nv_exp_f32 v12, v12\nv_mov_b32 v8, v11")
    a(f"v_mul_f32 v10, {SC}, v11\nv_sub_f32 v10, 0, v10")
    a("v_mul_f32 v9, v9, v12")
    for k in range(32): a(f"v_mul_f32 v{O+k}, v{O+k}, v12")
    a.label(f"L_nors{uid[0]}")
    for e in range(8): a(f"v_fma_f32 v{S0+e}, v{S0+e}, {SC}, v10")
    for e in range(8): a(f"v_exp_f32 v{S0+e}, v{S0+e}")
    for jj in range(4): a(f"v_cvt_pk_bf16_f32 v{P+jj}, v{S0+2*jj}, v{S0+2*jj+1}")
    a(f"v_add_f32 v12, v{S0}, v{S0+1}\nv_add_f32 v13, v{S0+2}, v{S0+3}\nv_add_f32 v14, v{S0+4}, v{S0+5}\nv_add_f32 v15, v{S0+6}, v{S0+7}")
    a("v_add_f32 v12, v12, v13\nv_add_f32 v14, v14, v15\nv_add_f32 v9, v9, v12\nv_add_f32 v9, v9, v14")
def p_pv(V):
    perm_mfma(V, lambda e, X: a(f"v_mfma_f32_16x16x32_bf16 {vr(O+e*4)}, {vr(X)}, {vr(P)}, {vr(O+e*4)}"))
def process(slot, prefetch, wK, wV, claim=False, dynoff=False, drain=None):
    K = KB[slot]; V = VB[slot]
    a(f"s_waitcnt vmcnt({wK})")
    if dynoff: a(f"v_readfirstlane_b32 s8, v{224+slot}")
    p_qk_mfma(K)
    if dynoff:
        NS = OPT['dyn']
        a(f"""
s_and_b32 s9, s8, 7
s_lshl_b32 s9, s9, 20
s_bfe_u32 s10, s8, 0x20003
s_lshl_b32 s10, s10, 13
s_add_u32 s9, s9, s10
s_lshr_b32 s10, s8, 5
s_add_u32 s10, s10, {NS}
s_lshl_b32 s10, s10, 15
s_add_u32 s56, s9, s10
s_add_u32 s57, s56, 4096
s_cmp_lt_u32 s8, {32*(32-NS)}
s_cselect_b32 s{64+slot}, 1, 0
s_cbranch_scc0 {drain}
""")
    if claim:
        a(f"s_mov_b64 exec, 1\nv_mov_b32 v{224+slot}, 1\nbuffer_atomic_add v{224+slot}, v226, {WS}, s62 offen sc0 sc1\ns_mov_b64 exec, -1")
    if prefetch: issueK(slot)
    p_soft()
    a(f"s_waitcnt vmcnt({wV})")
    p_pv(V)
    if prefetch:
        issueV(slot)
        if not dynoff: advance()
stamp(3)
if not OPT['dyn']:
    a("s_mov_b32 s61, 15")
    a.label("L_att_loop")
    process(0, True, 24, 24); process(1, True, 24, 24)
    a("s_sub_u32 s61, s61, 1\ns_cmp_lg_u32 s61, 0\ns_cbranch_scc1 L_att_loop")
    process(0, False, 24, 16); process(1, False, 8, 0)
else:
    NS = OPT['dyn']
    assert NS % 2 == 0
    a(f"s_mov_b32 s61, {(NS-4)//2}\ns_mov_b32 s64, 1\ns_mov_b32 s65, 1")
    a.label("L_att_loop")
    process(0, True, 24, 24); process(1, True, 24, 24)
    a("s_sub_u32 s61, s61, 1\ns_cmp_lg_u32 s61, 0\ns_cbranch_scc1 L_att_loop")
    process(0, True, 24, 25, claim=True)
    process(1, True, 25, 26, claim=True)
    a.label("L_dyn_loop")
    process(0, True, 25, 26, claim=True, dynoff=True, drain="L_drain0")
    process(1, True, 25, 26, claim=True, dynoff=True, drain="L_drain1")
    a("s_branch L_dyn_loop")
    for sl in range(2):
        a.label(f"L_drain{sl}")
        p_soft(); a("s_waitcnt vmcnt(17)"); p_pv(VB[sl])
        a(f"s_cmp_eq_u32 s{64+(sl^1)}, 0\ns_cbranch_scc1 L_dyn_done")
        a("s_waitcnt vmcnt(8)"); p_qk_mfma(KB[sl^1]); p_soft(); a("s_waitcnt vmcnt(0)"); p_pv(VB[sl^1])
        if sl == 0: a("s_branch L_dyn_done")
    a.label("L_dyn_done")
stamp(4)
xreduce(9, 12, "v_add_f32")
a(f"""
s_lshl_b32 s8, s3, 10
v_and_b32 v6, 1, v2
v_lshlrev_b32 v6, 9, v6
v_lshl_add_u32 v6, v3, 7, v6
v_add_u32 v6, s8, v6
s_lshl_b32 s8, s3, 4
v_lshlrev_b32 v7, 3, v2
v_add_u32 v7, s8, v7
v_add_u32 v6, {L_AO}, v6
s_mov_b32 exec_lo, 0x00030003
s_mov_b32 exec_hi, 0x00030003
""")
for r in range(4):
    for e in range(0, 8, 2):
        a(f"ds_write2_b32 v6, v{O+4*e+r}, v{O+4*(e+1)+r} offset0:{r*8+e} offset1:{r*8+e+1}")
a(f"s_mov_b64 exec, 3\nds_write_b64 v7, v[8:9] offset:{L_AML}")
a("s_waitcnt lgkmcnt(0)\ns_barrier")
if DBG:
    stamp(5)
    a("s_cmp_lg_u32 s3, 0\ns_cbranch_scc1 L_end")
    a("s_waitcnt lgkmcnt(0) vmcnt(0)\ns_mov_b64 exec, 1")
    a(f"s_lshl_b32 s12, s2, 8\ns_add_u32 s12, s12, {0x200000}\nv_mov_b32 v4, 0")
    for k in range(6):
        a(f"v_mov_b32 v5, s{72+2*k}\nbuffer_store_dword v5, v4, {WS}, s12 offen offset:{k*4}")
a("s_endpgm")

a.label("L_aux2")
if not OPT['early']:
    vmx = VM()
    tile_voffs()
    a("s_cmp_eq_u32 s3, 0\ns_cbranch_scc0 L_lt1")
    tile_issue(vmx, True)
    a("s_branch L_lt2")
    a.label("L_lt1")
    tile_issue(VM(), False)
    a.label("L_lt2")
for _ in range(OPT['hdelay']): a("s_sleep 127")
a("s_waitcnt vmcnt(0)")
WX = 160
for i in range(4):
    for hlf, sel in enumerate((SEL_LO, SEL_HI)):
        for jj in range(4):
            a(f"v_perm_b32 v{WX + (2*i+hlf)*4 + jj}, v{R_WO+(2*jj+1)*4+i}, v{R_WO+(2*jj)*4+i}, {sel}")
a("v_lshlrev_b32 v4, 4, v2")
def body():
    a("global_load_dword v30, v4, s[38:39] sc1\ns_waitcnt vmcnt(0)\nv_cmp_gt_u32 vcc, 16, v30")
spin("all", body, "s_cbranch_vccz", OPT["slowsleep"])
a(f"""
v_lshrrev_b32 v4, 5, v0
v_mul_u32_u24 v4, 18432, v4
v_and_b32 v5, 31, v0
v_lshl_add_u32 v4, v5, 2, v4
s_lshl_b32 s8, s63, 2
s_add_u32 s8, s8, {W_H}
s_add_u32 s9, s8, 36864
s_add_u32 s10, s8, {2*36864}
s_add_u32 s11, s8, {3*36864}
s_mov_b32 s48, s30
s_mov_b32 s49, s31
s_mov_b32 s50, 9216
s_mov_b32 s51, 0x20000
v_lshlrev_b32 v6, 1, v5
s_lshl_b32 s13, s63, 1
buffer_load_ushort v24, v6, s[48:51], s13 offen
buffer_load_ushort v25, v6, s[48:51], s13 offen offset:256
v_add_u32 v7, 512, v4
v_cmp_gt_u32 vcc, 16, v5
v_mov_b32 v26, 0x40000000
v_cndmask_b32 v7, v26, v7, vcc
s_cmp_eq_u32 s3, 0
s_cselect_b32 s13, 0, 0x40000000
v_add_u32 v7, s13, v7
""")
def body():
    for rg, so in enumerate(('s8', 's9', 's10', 's11')):
        a(f"buffer_load_dword v{16+rg}, v4, {WS}, {so} offen {SCB}")
    for rg, so in enumerate(('s8', 's9', 's10', 's11')):
        a(f"buffer_load_dword v{20+rg}, v7, {WS}, {so} offen {SCB}")
    a("s_waitcnt vmcnt(0)")
    anyinvalid(26, range(16, 24))
spin("h", body, "s_cbranch_vccz", OPT["slowsleep"])
def h_finish(p, b1, dst):
    a(f"""
v_add_f32 v{p}, v{p}, v{p+1}
v_add_f32 v{p+2}, v{p+2}, v{p+3}
v_add_f32 v{p}, v{p}, v{p+2}
v_lshlrev_b32 v{b1}, 16, v{b1}
v_cvt_pk_bf16_f32 v{p}, v{p}, v{p}
v_lshlrev_b32 v{p}, 16, v{p}
v_add_f32 v{p}, v{p}, v{b1}
v_cvt_pk_bf16_f32 v{p}, v{p}, v{p}
v_lshlrev_b32 v{p}, 16, v{p}
v_max_f32 v{p}, 0, v{p}
v_mul_f32 v{p}, v{p}, v{p}
v_cvt_pk_bf16_f32 v{dst}, v{p}, v{p}
""")
h_finish(16, 24, 26); h_finish(20, 25, 27)
a(f"""
s_lshl_b32 s13, s3, 9
s_add_u32 s13, s13, {L_OB}
v_lshl_add_u32 v6, v0, 1, s13
ds_write_b16 v6, v26
ds_write_b16 v6, v27 offset:128
v_and_b32 v7, 1, v2
v_lshlrev_b32 v7, 6, v7
v_lshl_add_u32 v7, v3, 4, v7
v_add_u32 v7, s13, v7
s_waitcnt lgkmcnt(0)
ds_read_b128 v[16:19], v7
ds_read_b128 v[20:23], v7 offset:128
s_waitcnt lgkmcnt(0)
""")
gemv_tile(R_W2, 16, True)
a("s_cmp_eq_u32 s3, 0\ns_cbranch_scc0 L_no_x2")
gemv_tile(R_X, 20, False)
a.label("L_no_x2")
stamp(4)
a(f"s_cmp_lg_u32 s3, 1\ns_cbranch_scc1 L_nobase\ns_lshl_b32 s8, {CS}, 1\ns_cmp_lg_u32 s8, s4\ns_cbranch_scc1 L_nobase")
a(f"""
s_mov_b32 s48, s34
s_mov_b32 s49, s35
s_mov_b32 s50, 1152
s_mov_b32 s51, 0x20000
s_lshl_b32 s8, {CS}, 7
v_and_b32 v5, 31, v0
v_lshlrev_b32 v5, 3, v5
buffer_load_dwordx2 v[24:25], v5, s[48:51], s8 offen
s_mul_i32 s9, s5, 1152
s_add_u32 s8, s8, s9
s_mov_b32 s44, s16
s_mov_b32 s45, s17
s_mov_b32 s46, 2304
s_mov_b32 s47, 0x20000
buffer_load_dwordx2 v[26:27], v5, s[44:47], s8 offen
s_waitcnt vmcnt(0)
""")
for k in range(2):
    a(f"""
v_lshlrev_b32 v{28+2*k}, 16, v{24+k}
v_and_b32 v{29+2*k}, 0xffff0000, v{24+k}
v_lshlrev_b32 v46, 16, v{26+k}
v_and_b32 v47, 0xffff0000, v{26+k}
v_add_f32 v{28+2*k}, v{28+2*k}, v46
v_add_f32 v{29+2*k}, v{29+2*k}, v47
""")
a.label("L_nobase")
stamp(5)
a(f"""
v_lshrrev_b32 v4, 5, v0
v_lshlrev_b32 v5, 11, v4
v_lshlrev_b32 v4, 17, v4
v_and_b32 v6, 31, v0
v_lshl_add_u32 v4, v6, 2, v4
s_lshl_b32 s8, s4, 13
s_lshl_b32 s9, s5, 9
s_add_u32 s8, s8, s9
s_lshl_b32 s9, s3, 7
s_add_u32 s8, s8, s9
s_add_u32 s9, s8, 4096
s_lshl_b32 s10, s4, 7
s_lshl_b32 s11, s5, 6
s_add_u32 s10, s10, s11
s_add_u32 s10, s10, {W_ML}
s_barrier
""")
stamp(6)
a("s_cmp_lg_u32 s3, 0\ns_cbranch_scc1 L_l1")
a(f"""
v_lshlrev_b32 v6, 4, v0
v_lshrrev_b32 v7, 5, v0
v_lshlrev_b32 v7, 3, v7
""")
for w in range(4):
    a(f"ds_read_b128 {vr(96+4*w)}, v6 offset:{L_AO + w*1024}")
    a(f"ds_read_b64 v[{112+2*w}:{113+2*w}], v7 offset:{L_AML + w*16}")
a(f"""
s_lshl_b32 s12, s7, 13
s_lshl_b32 s13, s6, 10
s_add_u32 s12, s12, s13
s_lshl_b32 s13, s7, 7
s_lshl_b32 s14, s6, 3
s_add_u32 s13, s13, s14
s_add_u32 s13, s13, {W_ML}
v_lshlrev_b32 v7, 1, v0
s_waitcnt lgkmcnt(0)
v_max3_f32 v120, v112, v114, v116
v_max_f32 v120, v120, v118
""")
for w in range(4): a(f"v_sub_f32 v{122+w}, v{112+2*w}, v120")
for w in range(4): a(f"v_mul_f32 v{122+w}, {SC}, v{122+w}")
for w in range(4): a(f"v_exp_f32 v{122+w}, v{122+w}")
a("v_mul_f32 v121, v122, v113")
for k in range(4): a(f"v_mul_f32 v{128+k}, v122, v{96+k}")
for w in range(1, 4):
    a(f"v_fmac_f32 v121, v{122+w}, v{113+2*w}")
    for k in range(4): a(f"v_fmac_f32 v{128+k}, v{122+w}, v{96+4*w+k}")
for k in range(4): a(f"v_min_u32 v{128+k}, -2, v{128+k}")
a(f"""
v_min_u32 v120, -2, v120
v_min_u32 v121, -2, v121
buffer_store_dwordx4 v[128:131], v6, {WS}, s12 offen {SCB}
s_mov_b32 exec_lo, 1
s_mov_b32 exec_hi, 1
buffer_store_dwordx2 v[120:121], v7, {WS}, s13 offen {SCB}
s_mov_b64 exec, -1
""")
a.label("L_l1")
def body():
    for s_ in range(8):
        a(f"buffer_load_dword v{96+s_}, v4, {WS}, {'s8' if s_ < 4 else 's9'} offen offset:{(s_%4)*1024} {SCB}")
    for k in range(4):
        a(f"buffer_load_dwordx4 {vr(104+4*k)}, v5, {WS}, s10 offen offset:{k*16} {SCB}")
    a("s_waitcnt vmcnt(0)")
    anyinvalid(120, range(96, 120))
spin("l1", body, "s_cbranch_vccz")
stamp(7)
a("v_max3_f32 v120, v104, v106, v108\nv_max3_f32 v120, v120, v110, v112\nv_max3_f32 v120, v120, v114, v116\nv_max_f32 v120, v120, v118")
for s_ in range(8): a(f"v_sub_f32 v{122+s_}, v{104+2*s_}, v120")
for s_ in range(8): a(f"v_mul_f32 v{122+s_}, {SC}, v{122+s_}")
for s_ in range(8): a(f"v_exp_f32 v{122+s_}, v{122+s_}")
a("v_mul_f32 v121, v122, v105\nv_mul_f32 v130, v122, v96")
for s_ in range(1, 8):
    a(f"v_fmac_f32 v121, v{122+s_}, v{105+2*s_}\nv_fmac_f32 v130, v{122+s_}, v{96+s_}")
a(f"""
v_rcp_f32 v121, v121
s_lshl_b32 s12, s3, 9
s_add_u32 s12, s12, {L_OB}
v_lshl_add_u32 v6, v0, 1, s12
v_mul_f32 v130, v130, v121
v_cvt_pk_bf16_f32 v130, v130, v130
ds_write_b16 v6, v130
v_and_b32 v7, 1, v2
v_lshlrev_b32 v7, 6, v7
v_lshl_add_u32 v7, v3, 4, v7
v_add_u32 v7, s12, v7
s_waitcnt lgkmcnt(0)
ds_read_b128 v[132:135], v7
s_waitcnt lgkmcnt(0)
""")
for e in range(8):
    D = vr(O+4*e)
    a(f"v_mfma_f32_16x16x32_bf16 {D}, {vr(132)}, {vr(WX+e*4)}, {D}")
a(f"s_lshl_b32 s12, s3, 10\ns_add_u32 s12, s12, {L_YP}\nv_lshl_add_u32 v6, v2, 5, s12\ns_mov_b64 exec, 0xffff")
for b in range(2):
    for e in range(0, 8, 2):
        a(f"ds_write2_b32 v6, v{O+4*e+b}, v{O+4*(e+1)+b} offset0:{b*128+e} offset1:{b*128+e+1}")
a("s_mov_b64 exec, -1\ns_waitcnt lgkmcnt(0)\ns_barrier")
stamp(8)
a("s_cmp_eq_u32 s3, 1\ns_cbranch_scc1 L_final\ns_cmp_lg_u32 s3, 0\ns_cbranch_scc1 L_endaux")
a("v_lshlrev_b32 v6, 4, v0")
for w in range(4): a(f"ds_read_b128 {vr(96+4*w)}, v6 offset:{L_YP + w*1024}")
a(f"""
s_lshl_b32 s13, {CS}, 15
s_lshl_b32 s14, s4, 10
s_add_u32 s13, s13, s14
s_lshl_b32 s14, s5, 9
s_add_u32 s13, s13, s14
s_add_u32 s13, s13, {W_Y}
v_lshrrev_b32 v11, 5, v0
v_lshlrev_b32 v11, 14, v11
v_and_b32 v7, 31, v0
v_lshl_add_u32 v11, v7, 4, v11
s_mov_b32 s14, 0x0000ffff
s_cmp_eq_u32 {CS}, 7
s_cselect_b32 s14, -1, s14
s_waitcnt lgkmcnt(0)
""")
for k in range(4):
    a(f"v_add_f32 v{96+k}, v{96+k}, v{100+k}\nv_add_f32 v{104+k}, v{104+k}, v{108+k}")
for k in range(4):
    a(f"v_add_f32 v{96+k}, v{96+k}, v{104+k}")
for k in range(4): a(f"v_min_u32 v{96+k}, -2, v{96+k}")
a(f"""
s_mov_b32 exec_lo, s14
s_mov_b32 exec_hi, s14
buffer_store_dwordx4 v[96:99], v11, {WS}, s13 offen {SCB}
s_branch L_endaux
""")
a.label("L_final")
a(f"""
s_lshl_b32 s8, {CS}, 1
s_cmp_lg_u32 s8, s4
s_cbranch_scc1 L_endaux
s_lshl_b32 s8, {CS}, 15
s_lshl_b32 s9, s5, 14
s_add_u32 s8, s8, s9
s_add_u32 s8, s8, {W_Y}
s_add_u32 s9, s8, 4096
v_lshrrev_b32 v4, 5, v0
v_lshlrev_b32 v4, 13, v4
v_and_b32 v5, 31, v0
v_lshl_add_u32 v4, v5, 4, v4
s_mov_b32 s14, 0x0000ffff
s_cmp_eq_u32 {CS}, 7
s_cselect_b32 s14, -1, s14
s_mov_b32 exec_lo, s14
s_mov_b32 exec_hi, s14
""")
def body():
    for k in range(16):
        a(f"buffer_load_dwordx4 {vr(96+4*k)}, v4, {WS}, {'s8' if k < 8 else 's9'} offen offset:{(k%8)*512} {SCB}")
    a("s_waitcnt vmcnt(0)")
    anyinvalid(160, range(96, 160))
spin("fin", body, "s_cbranch_vccz")
for st in (1, 2, 4, 8):
    for k in range(0, 16, 2*st):
        for c in range(4):
            a(f"v_add_f32 v{96+4*k+c}, v{96+4*k+c}, v{96+4*(k+st)+c}")
a("s_mov_b64 exec, -1")
for c in range(4): xswap32(96+c, 160+c, "v_add_f32")
for c in range(4): a(f"v_add_f32 v{96+c}, v{96+c}, v{28+c}")
a(f"""
v_cvt_pk_bf16_f32 v96, v96, v97
v_cvt_pk_bf16_f32 v97, v98, v99
s_mov_b32 s48, s36
s_mov_b32 s49, s37
s_mov_b32 s50, 2304
s_mov_b32 s51, 0x20000
s_lshl_b32 s8, {CS}, 7
s_mul_i32 s9, s5, 1152
s_add_u32 s8, s8, s9
v_lshlrev_b32 v5, 3, v5
s_mov_b32 exec_lo, s14
s_mov_b32 exec_hi, 0
buffer_store_dwordx2 v[96:97], v5, s[48:51], s8 offen
""")
a.label("L_endaux")
if DBG:
    stamp(9)
    a("s_waitcnt lgkmcnt(0) vmcnt(0)\ns_mov_b64 exec, 1")
    a(f"s_lshl_b32 s12, s2, 9\ns_lshl_b32 s13, s3, 6\ns_add_u32 s12, s12, s13\ns_add_u32 s12, s12, {0x280000}\nv_mov_b32 v4, 0")
    for k in range(10):
        a(f"v_mov_b32 v5, s{72+2*k}\nbuffer_store_dword v5, v4, {WS}, s12 offen offset:{k*4}")
a.label("L_end")
a("s_endpgm")

ref = open('cdna_kernels/' + NAME + '.s.ref').read().split('\n')
hdr = [l for l in ref if l.startswith(';') and '@launch' not in l]
out = "\n".join(hdr) + f"\n; @launch grid=(256,1,1) block=(512,1,1) lds={LDS_BYTES}\n"
out += f""".amdgcn_target "amdgcn-amd-amdhsa--gfx950"
.text
.globl {NAME}_kernel
.p2align 8
.type {NAME}_kernel,@function
{NAME}_kernel:
""" + a.text() + f""".section .rodata,"a"
.p2align 6
.amdhsa_kernel {NAME}_kernel
  .amdhsa_next_free_vgpr 256
  .amdhsa_next_free_sgpr 102
  .amdhsa_accum_offset 256
  .amdhsa_group_segment_fixed_size 0
  .amdhsa_kernarg_size 104
  .amdhsa_user_sgpr_count 2
  .amdhsa_user_sgpr_kernarg_segment_ptr 1
  .amdhsa_system_sgpr_workgroup_id_x 1
.end_amdhsa_kernel
"""
open(sys.argv[1], 'w').write(out)
print("lines", len(a.lines), "nops", a.nops)
```

```python
import sys, struct, math
from asmlib import *
NAME = "parallel_sum__gqa_block_cached__dense_activation_squared_relu__decode"
def f32(x): return struct.unpack('<I', struct.pack('<f', x))[0]
CSCALE = f32((128 ** -0.5) * math.log2(math.e))
OPT = dict(nt='nt', wnt='nt', dbg=0, spin=0x10000, hold=1, slowsleep=16, dyn=30, sc='sc0_sc1', rot=1, early=0, hdelay=0, nofam=0, holdx=0, rotm=5, late=0, hearly=2, pp=0, ppsleep=10, qsleep=24)
for arg in sys.argv[2:]:
    k, v = arg.split('='); assert k in OPT, k; OPT[k] = v if not v.lstrip('-').isdigit() else int(v)
NT = OPT['nt']; WNT = OPT['wnt']; DBG = OPT['dbg']; SPIN = OPT['spin']; SCB = OPT['sc'].replace('_', ' ')
L_Q = 0x0000
L_FLAG = 0x0200
L_YP = 0x0400
L_AO = 0x1400
L_AML = 0x2400
L_OB = 0x2500
L_XN = 0x2D00
LDS_BYTES = 0x5D00
W_O = 0; W_ML = 0x40000; W_CTR = 0x44000; W_Q = 0x48000; W_H = 0x68000; W_Y = 0x90000
a = Asm()
class VM:
    def __init__(s): s.q = []
    def issue(s, tag): s.q.append(tag)
    def wait(s, tag):
        idx = max(i for i, t in enumerate(s.q) if t == tag)
        n = len(s.q) - 1 - idx
        assert n <= 63
        a(f"s_waitcnt vmcnt({n})"); s.q = s.q[idx+1:]
def stamp(k):
    if DBG: a(f"s_memrealtime s[{72+2*k}:{73+2*k}]")
def vr(b, n=4): return f"v[{b}:{b+n-1}]"
S0, S1, P, XA, XB, O = 32, 36, 40, 48, 56, 64
Q = 16
KB = [96, 128]; VB = [160, 192]
SEL_LO, SEL_HI, SC = 's59', 's60', 's58'
WS = 's[52:55]'
CS = 's61'
def xswap16(v, t, op):
    a(f"v_mov_b32 v{t}, v{v}\nv_permlane16_swap_b32 v{v}, v{t}\n{op} v{v}, v{v}, v{t}")
def xswap32(v, t, op):
    a(f"v_mov_b32 v{t}, v{v}\nv_permlane32_swap_b32 v{v}, v{t}\n{op} v{v}, v{v}, v{t}")
def xreduce(v, t, op): xswap16(v, t, op); xswap32(v, t, op)
def rowreduce(v, op):
    for m in ("quad_perm:[1,0,3,2]", "quad_perm:[2,3,0,1]", "row_half_mirror", "row_mirror"):
        a(f"{op}_dpp v{v}, v{v}, v{v} {m} row_mask:0xf bank_mask:0xf")
def perm_mfma(base, fn):
    for i in range(4):
        X = XA if i % 2 == 0 else XB
        for jj in range(4):
            a(f"v_perm_b32 v{X+jj}, v{base+(2*jj+1)*4+i}, v{base+(2*jj)*4+i}, {SEL_LO}")
        for jj in range(4):
            a(f"v_perm_b32 v{X+4+jj}, v{base+(2*jj+1)*4+i}, v{base+(2*jj)*4+i}, {SEL_HI}")
        for hlf in range(2): fn(2*i+hlf, X+4*hlf)
def gemv_tile(base, A, first):
    perm_mfma(base, lambda e, X: a(f"v_mfma_f32_16x16x32_bf16 {vr(O+e*4)}, {vr(A)}, {vr(X)}, {'0' if first else vr(O+e*4)}"))
uid = [0]
def spin(name, body, okcond_branch, sleep=1):
    a(f"s_mov_b32 s12, {SPIN}")
    a.label(f"L_{name}_poll")
    body()
    a(f"{okcond_branch} L_{name}_ok")
    a(f"s_sleep {sleep}\ns_sub_u32 s12, s12, 1\ns_cmp_lg_u32 s12, 0\ns_cbranch_scc1 L_{name}_poll")
    a.label(f"L_{name}_ok")
def spin2(name, issue, nloads, check, post, sleep):
    a(f"s_mov_b32 s12, {SPIN}")
    issue(0)
    a(f"s_sleep {sleep}")
    a.label(f"L_{name}_poll")
    issue(1)
    a(f"s_waitcnt vmcnt({nloads})")
    check(0)
    a(f"s_cbranch_vccz L_{name}_ok0")
    issue(0)
    a(f"s_waitcnt vmcnt({nloads})")
    check(1)
    a(f"s_cbranch_vccz L_{name}_ok1")
    a(f"s_sub_u32 s12, s12, 1\ns_cmp_lg_u32 s12, 0\ns_cbranch_scc1 L_{name}_poll")
    a.label(f"L_{name}_ok1")
    post(1)
    a(f"s_branch L_{name}_done")
    a.label(f"L_{name}_ok0")
    post(0)
    a.label(f"L_{name}_done")
def anyinvalid(dst, regs):
    regs = list(regs)
    a(f"v_max3_u32 v{dst}, v{regs[0]}, v{regs[1]}, v{regs[2]}")
    rest = regs[3:]
    while len(rest) >= 2:
        a(f"v_max3_u32 v{dst}, v{dst}, v{rest[0]}, v{rest[1]}"); rest = rest[2:]
    if rest: a(f"v_max_u32 v{dst}, v{dst}, v{rest[0]}")
    a(f"v_cmp_eq_u32 vcc, -1, v{dst}")

a(f"""
s_cmp_ge_u32 s2, 256
s_cbranch_scc1 L_end
s_load_dwordx16 s[16:31], s[0:1], 0
s_load_dwordx8 s[32:39], s[0:1], 64
s_load_dwordx2 s[40:41], s[0:1], 96
v_lshrrev_b32 v1, 6, v0
v_and_b32 v0, 63, v0
v_readfirstlane_b32 s3, v1
s_lshr_b32 s7, s2, 3
s_and_b32 s6, s2, 7
s_and_b32 s4, s7, 15
s_lshr_b32 s5, s7, 4
v_and_b32 v2, 15, v0
v_lshrrev_b32 v3, 4, v0
{"s_memrealtime s[72:73]" if DBG else ""}
s_mov_b32 {SEL_LO}, 0x05040100
s_mov_b32 {SEL_HI}, 0x07060302
s_mov_b32 {SC}, {CSCALE:#x}
s_cmp_ge_u32 s3, 4
s_cbranch_scc1 L_aux
""")
a(f"""
v_lshlrev_b32 v4, 8, v2
v_lshl_add_u32 v4, v3, 4, v4
v_lshlrev_b32 v5, 10, v3
v_lshl_add_u32 v5, v2, 4, v5
s_lshl_b32 s8, s7, 23
s_lshl_b32 s9, s6, 20
s_lshl_b32 s66, s3, 13
s_add_u32 s66, s66, s9
s_mul_i32 s63, s7, {OPT['rotm']}
s_and_b32 s63, s63, 31
s_lshl_b32 s63, s63, 15
s_mov_b32 s67, s63
s_add_u32 s56, s66, s63
s_add_u32 s57, s56, 4096
s_mov_b32 s46, 0x800000
s_mov_b32 s47, 0x20000
s_mov_b32 s50, 0x800000
s_mov_b32 s51, 0x20000
s_mov_b32 s54, 0x40000000
s_mov_b32 s55, 0x20000
s_lshl_b32 s62, s7, 8
s_add_u32 s62, s62, {W_CTR}
v_mov_b32 v226, 0
s_waitcnt lgkmcnt(0)
s_mov_b32 s52, s40
s_mov_b32 s53, s41
s_add_u32 s44, s18, s8
s_addc_u32 s45, s19, 0
s_add_u32 s48, s20, s8
s_addc_u32 s49, s21, 0
s_barrier
s_barrier
""")
def issueK(slot):
    for j in range(8):
        t, jj = j >> 2, j & 3
        a(f"buffer_load_dwordx4 {vr(KB[slot]+(t*4+jj)*4)}, v4, s[44:47], s{56+t} offen offset:{jj*64} {NT}")
def issueV(slot):
    for j in range(8):
        t, r = j >> 2, j & 3
        a(f"buffer_load_dwordx4 {vr(VB[slot]+(t*4+r)*4)}, v5, s[48:51], s{56+t} offen offset:{r*256} {NT}")
def advance():
    a("s_add_u32 s63, s63, 0x8000\ns_and_b32 s63, s63, 0xf8000\ns_add_u32 s56, s66, s63\ns_add_u32 s57, s56, 4096")
for slot in range(2):
    issueK(slot); issueV(slot); advance()
a("s_branch L_att_main")

def h_item(sid, srg, slc):
    a(f"""
s_cmp_ge_u32 {sid}, 72
s_cselect_b32 {srg}, 1, 0
s_cmp_ge_u32 {sid}, 144
s_cselect_b32 {srg}, 2, {srg}
s_cmp_ge_u32 {sid}, 216
s_cselect_b32 {srg}, 3, {srg}
s_mul_i32 {slc}, {srg}, 72
s_sub_u32 {slc}, {sid}, {slc}
""")
TV = 36
R_WO, R_W2, R_X = 224, 192, 128
def tile_voffs():
    a(f"v_mul_u32_u24 v{TV}, {8*1152}, v3\nv_lshl_add_u32 v{TV}, v2, 4, v{TV}")
    for j in range(1, 8): a(f"v_add_u32 v{TV+j}, {j*1152}, v{TV}")
def tile_soffs():
    a(f"""
s_lshl_b32 s10, s4, 8
s_lshl_b32 s11, s5, 7
s_add_u32 s10, s10, s11
s_lshl_b32 s11, s3, 5
s_add_u32 s10, s10, s11
s_mul_i32 s66, s10, 1152
s_lshl_b32 s11, {CS}, 7
s_add_u32 s66, s66, s11
s_mul_i32 s10, s4, 288
s_mul_i32 s14, s5, 144
s_add_u32 s10, s10, s14
s_lshl_b32 s14, s3, 5
s_add_u32 s63, s10, s14
s_mul_i32 s67, s63, 1152
s_add_u32 s67, s67, s11
s_mov_b32 s68, 0x00ff00ff
s_cmp_eq_u32 {CS}, 7
s_cselect_b32 s68, -1, s68
s_mov_b32 s69, s68
s_mov_b32 s94, {4096*1152}
s_mov_b32 s95, 0x20000
s_mov_b32 s98, {4608*1152}
s_mov_b32 s99, 0x20000
""")
def tile_ptrs():
    a("s_mov_b32 s92, s24\ns_mov_b32 s93, s25\ns_mov_b32 s96, s32\ns_mov_b32 s97, s33")
def tile_issue(vm, extra):
    a("s_mov_b64 exec, s[68:69]")
    for j in range(8):
        a(f"buffer_load_dwordx4 {vr(R_WO+j*4)}, v{TV+j}, s[92:95], s66 offen {WNT}"); vm.issue('wo')
    for j in range(8):
        a(f"buffer_load_dwordx4 {vr(R_W2+j*4)}, v{TV+j}, s[96:99], s67 offen {WNT}"); vm.issue('w2')
    if extra:
        a(f"s_mov_b64 exec, -1\nv_mov_b32 v44, 0x40000000\nv_cmp_gt_u32 vcc, 32, v0\ns_add_u32 s14, s67, {128*1152}\ns_mov_b64 exec, s[68:69]")
        for j in range(8):
            a(f"v_cndmask_b32 v45, v44, v{TV+j}, vcc\nbuffer_load_dwordx4 {vr(R_X+j*4)}, v45, s[96:99], s14 offen {WNT}"); vm.issue('wx')
    a("s_mov_b64 exec, -1")
a.label("L_aux")
a(f"""
s_sub_u32 s3, s3, 4
s_lshl_b32 s62, s5, 3
s_add_u32 s62, s62, s6
s_add_u32 {CS}, s6, {"s4" if OPT['rot'] else "0"}
s_and_b32 {CS}, {CS}, 7
s_lshl_b32 s64, {CS}, 5
s_add_u32 s64, s64, s7
s_add_u32 s65, s64, 224
""")
if OPT['early']: tile_voffs(); tile_soffs()
a("s_cmp_eq_u32 s3, 1\ns_cbranch_scc1 L_qunit\ns_setprio 2\ns_cmp_lg_u32 s3, 0\ns_cbranch_scc1 L_aux23")
a(f"""
v_mov_b32 v4, 0
v_mov_b32 v5, {L_FLAG}
ds_write_b32 v5, v4
v_mov_b32 v24, -1
v_mov_b32 v25, -1
v_mov_b32 v26, -1
v_mov_b32 v27, -1
""")
h_item('s64', 's10', 's11')
a(f"""
s_mul_i32 s10, s10, 36864
s_lshl_b32 s11, s11, 8
s_add_u32 s10, s10, s11
s_add_u32 s10, s10, {W_H}
""")
h_item('s65', 's11', 's13')
a(f"""
s_mul_i32 s11, s11, 36864
s_lshl_b32 s13, s13, 8
s_add_u32 s11, s11, s13
s_add_u32 s11, s11, {W_H}
s_and_b32 s8, s62, 3
s_lshl_b32 s8, s8, 8
s_lshr_b32 s9, s62, 2
s_lshl_b32 s9, s9, 10
s_add_u32 s8, s8, s9
s_lshl_b32 s9, s4, 13
s_add_u32 s8, s8, s9
s_add_u32 s8, s8, {W_Q}
v_and_b32 v6, 1, v3
v_lshlrev_b32 v7, 4, v2
v_lshl_add_u32 v8, v6, 12, v7
v_add_u32 v8, s8, v8
v_mul_u32_u24 v9, 18432, v6
v_add_u32 v9, v9, v7
v_add_u32 v10, s11, v9
v_add_u32 v9, s10, v9
v_cmp_gt_u32 vcc, 32, v0
v_cndmask_b32 v9, v9, v8, vcc
s_lshl_b32 s13, {CS}, 15
s_lshl_b32 s14, s4, 10
s_add_u32 s13, s13, s14
s_lshl_b32 s14, s5, 9
s_add_u32 s13, s13, s14
s_add_u32 s13, s13, {W_Y}
v_lshrrev_b32 v11, 5, v0
v_lshlrev_b32 v11, 14, v11
v_and_b32 v6, 31, v0
v_lshl_add_u32 v11, v6, 4, v11
s_lshl_b32 s8, s7, 13
s_lshl_b32 s9, s6, 10
s_add_u32 s8, s8, s9
v_lshlrev_b32 v12, 4, v0
s_lshl_b32 s9, s7, 7
s_lshl_b32 s14, s6, 3
s_add_u32 s9, s9, s14
s_add_u32 s9, s9, {W_ML}
v_lshlrev_b32 v13, 6, v0
s_mov_b32 s70, -1
s_cmp_eq_u32 {CS}, 7
s_cselect_b32 s70, 0, s70
s_mov_b32 s54, 0x40000000
s_mov_b32 s55, 0x20000
s_waitcnt lgkmcnt(0)
s_mov_b32 s52, s40
s_mov_b32 s53, s41
s_mov_b32 exec_hi, s70
buffer_store_dwordx4 v[24:27], v9, {WS}, 0 offen {SCB}
s_mov_b64 exec, -1
buffer_store_dwordx4 v[24:27], v12, {WS}, s8 offen {SCB}
buffer_store_dwordx4 v[24:27], v11, {WS}, s13 offen {SCB}
s_mov_b64 exec, 3
buffer_store_dwordx2 v[24:25], v13, {WS}, s9 offen {SCB}
s_cmp_lg_u32 s6, 0
s_cbranch_scc1 L_noctr
s_mov_b64 exec, 1
v_mov_b32 v28, 0
s_lshl_b32 s14, s7, 8
s_add_u32 s14, s14, {W_CTR}
buffer_store_dword v28, v28, {WS}, s14 offen {SCB}
L_noctr:
s_cmp_lt_u32 {CS}, 2
s_cbranch_scc0 L_noh2reset
s_mov_b32 exec_hi, 0
s_mov_b32 exec_lo, -1
buffer_store_dwordx4 v[24:27], v10, {WS}, 0 offen {SCB}
""")
a.label("L_noh2reset")
a("s_mov_b64 exec, -1")
if OPT['early']: tile_ptrs()
a("s_barrier")
vm = VM()
if OPT['early']:
    tile_issue(vm, True)
    nyoung = len(vm.q)
else: nyoung = 0
a(f"""
{"s_barrier" if OPT['holdx'] else ""}
s_mov_b64 exec, 1
s_lshl_b32 s11, s4, 4
v_mov_b32 v14, s11
v_mov_b32 v15, 1
s_waitcnt vmcnt({nyoung})
global_atomic_add v14, v15, s[38:39] sc1
ds_write_b32 v5, v15
{"s_barrier" if not OPT['holdx'] else ""}
""")
stamp(1)
def body():
    a("global_load_dword v16, v14, s[38:39] sc1\ns_waitcnt vmcnt(0)\nv_readfirstlane_b32 s8, v16\ns_cmp_ge_u32 s8, 16")
if not OPT['nofam']: spin("fam", body, "s_cbranch_scc1")
stamp(2)
a(f"""
s_mov_b64 exec, -1
s_lshl_b32 s8, s4, 13
s_lshl_b32 s9, s5, 12
s_add_u32 s8, s8, s9
s_add_u32 s8, s8, {W_Q}
""")
QB = [16, 96]
def q_issue(k):
    for rg in range(4):
        a(f"buffer_load_dwordx4 {vr(QB[k]+4*rg)}, v12, {WS}, s8 offen offset:{rg*1024} {SCB}")
def q_post(k):
    b = QB[k]
    for c in range(4):
        a(f"v_add_f32 v{b+c}, v{b+c}, v{b+4+c}\nv_add_f32 v{b+8+c}, v{b+8+c}, v{b+12+c}\nv_add_f32 v{b+c}, v{b+c}, v{b+8+c}")
    a(f"""
v_cvt_pk_bf16_f32 v34, v{b}, v{b+1}
v_cvt_pk_bf16_f32 v35, v{b+2}, v{b+3}
v_lshlrev_b32 v33, 3, v0
ds_write_b64 v33, v[34:35] offset:{L_Q}
""")
if OPT['pp']:
    spin2("q", q_issue, 4, lambda k: anyinvalid(32, range(QB[k], QB[k]+16)), q_post, OPT['qsleep'])
else:
    def body():
        q_issue(0); a("s_waitcnt vmcnt(0)"); anyinvalid(32, range(16, 32))
    spin("q", body, "s_cbranch_vccz")
    q_post(0)
a("s_waitcnt lgkmcnt(0)")
stamp(3)
a("s_barrier\ns_branch L_aux2")

T0, T1, T2, T3, T4, T5, T6, T7 = 46, 47, 48, 49, 50, 51, 52, 53
def layernorm(vm):
    vm.wait('x')
    for k in range(10):
        a(f"v_lshlrev_b32 v{26+2*k}, 16, v{16+k}\nv_and_b32 v{27+2*k}, 0xffff0000, v{16+k}")
    a(f"v_add_f32 v{T0}, v26, v27\nv_add_f32 v{T1}, v28, v29")
    for k in range(4, 20, 2): a(f"v_add_f32 v{T0}, v{T0}, v{26+k}\nv_add_f32 v{T1}, v{T1}, v{27+k}")
    a(f"v_add_f32 v{T0}, v{T0}, v{T1}")
    rowreduce(T0, "v_add_f32"); xswap16(T0, T1, "v_add_f32")
    a(f"v_mul_f32 v{T0}, {f32(1.0/576):#x}, v{T0}")
    a(f"v_and_b32 v{T1}, 16, v0\nv_cmp_eq_u32 vcc, 0, v{T1}\nv_mov_b32 v{T2}, 0\nv_mov_b32 v{T4}, 0")
    for k in range(0, 20, 2):
        a(f"v_sub_f32 v{T3}, v{26+k}, v{T0}\nv_sub_f32 v{T5}, v{27+k}, v{T0}")
        if k >= 16: a(f"v_cndmask_b32 v{T3}, 0, v{T3}, vcc\nv_cndmask_b32 v{T5}, 0, v{T5}, vcc")
        a(f"v_fmac_f32 v{T2}, v{T3}, v{T3}\nv_fmac_f32 v{T4}, v{T5}, v{T5}")
    a(f"v_add_f32 v{T2}, v{T2}, v{T4}")
    rowreduce(T2, "v_add_f32"); xswap16(T2, T1, "v_add_f32")
    a(f"""
v_mul_f32 v{T2}, {f32(1.0/576):#x}, v{T2}
v_cvt_pk_bf16_f32 v{T1}, v{T0}, v{T2}
v_lshlrev_b32 v{T0}, 16, v{T1}
v_and_b32 v{T2}, 0xffff0000, v{T1}
v_add_f32 v{T2}, {f32(1e-5):#x}, v{T2}
v_cvt_pk_bf16_f32 v{T2}, v{T2}, v{T2}
v_lshlrev_b32 v{T2}, 16, v{T2}
v_sqrt_f32 v{T2}, v{T2}
v_cvt_pk_bf16_f32 v{T2}, v{T2}, v{T2}
v_lshlrev_b32 v{T2}, 16, v{T2}
v_rcp_f32 v{T2}, v{T2}
""")
    for k in range(10):
        t0, t1 = (T4, T5) if k % 2 == 0 else (T6, T7)
        a(f"v_sub_f32 v{t0}, v{26+2*k}, v{T0}\nv_sub_f32 v{t1}, v{27+2*k}, v{T0}")
        a(f"v_cvt_pk_bf16_f32 v{t0}, v{t0}, v{t1}")
        a(f"v_and_b32 v{t1}, 0xffff0000, v{t0}\nv_lshlrev_b32 v{t0}, 16, v{t0}")
        a(f"v_mul_f32 v{t0}, v{t0}, v{T2}\nv_mul_f32 v{t1}, v{t1}, v{T2}")
        a(f"v_cvt_pk_bf16_f32 v{16+k}, v{t0}, v{t1}")
    a(f"""
s_mul_i32 s13, s3, 3072
s_add_u32 s13, s13, {L_XN}
v_lshrrev_b32 v{T6}, 5, v0
v_mul_u32_u24 v{T6}, 1536, v{T6}
v_and_b32 v{T7}, 31, v0
v_lshl_add_u32 v{T6}, v{T7}, 3, v{T6}
v_add_u32 v{T6}, s13, v{T6}
""")
    for i in range(5): a(f"ds_write_b64 v{T6}, v[{16+2*i}:{17+2*i}] offset:{i*256}")
RING = [96, 128, 160]
def unit_addr(stride):
    a(f"""
v_lshrrev_b32 v6, 5, v0
v_mul_u32_u24 v6, 1152, v6
v_and_b32 v7, 31, v0
v_lshl_add_u32 v6, v7, 3, v6
v_add_u32 v7, 0x400, v6
v_and_b32 v8, 16, v0
v_cmp_eq_u32 vcc, 0, v8
v_mov_b32 v9, 0x40000000
v_cndmask_b32 v7, v9, v7, vcc
v_lshrrev_b32 v8, 3, v2
v_mul_u32_u24 v8, 72, v8
v_lshl_add_u32 v8, v3, 3, v8
v_mul_u32_u24 v8, {stride}, v8
v_and_b32 v10, 7, v2
v_lshl_add_u32 v8, v10, 4, v8
v_add_u32 v8, s8, v8
v_cmp_gt_u32 vcc, 16, v0
v_cndmask_b32 v5, v9, v8, vcc
""")
def unit_issue(vm, stride):
    for i in range(4):
        a(f"buffer_load_dwordx2 v[{16+2*i}:{17+2*i}], v6, s[44:47], 0 offen offset:{i*256}"); vm.issue('x')
    a("buffer_load_dwordx2 v[24:25], v7, s[44:47], 0 offen"); vm.issue('x')
    for j in range(1, 8): a(f"v_add_u32 v{8+j}, {stride}, v{8+j-1}")
    for st in range(3):
        if st == 2:
            a("v_mov_b32 v8, v5")
            for j in range(1, 8): a(f"v_add_u32 v{8+j}, {stride}, v{8+j-1}")
        a(f"s_mov_b32 s10, {st*32*stride}")
        for j in range(8):
            a(f"buffer_load_dwordx4 {vr(RING[st]+j*4)}, v{8+j}, s[48:51], s10 offen {WNT}"); vm.issue(('w', st))
def unit_compute(vm, srg, holdbar=False, st2=None):
    if holdbar and OPT['holdx'] == 2: a("s_barrier")
    if holdbar and OPT['holdx'] == 1:
        vm.wait('x'); vm.q.insert(0, 'x'); a("s_barrier")
    layernorm(vm)
    a(f"""
v_and_b32 v{T6}, 1, v2
v_mul_u32_u24 v{T6}, 1536, v{T6}
v_bfe_u32 v{T7}, v2, 1, 1
v_mul_u32_u24 v{T7}, 144, v{T7}
v_add_u32 v{T6}, v{T6}, v{T7}
v_lshl_add_u32 v{T6}, v3, 4, v{T6}
s_mul_i32 s9, {srg}, 288
s_add_u32 s9, s9, s13
v_add_u32 v{T6}, s9, v{T6}
s_waitcnt lgkmcnt(0)
""")
    for st in range(3): a(f"ds_read_b128 {vr(16+4*st)}, v{T6} offset:{st*64}")
    if st2 is not None: stamp(st2)
    a("s_waitcnt lgkmcnt(0)")
    for st in range(3):
        vm.wait(('w', st))
        if st == 2 and holdbar and OPT['holdx'] == 0: a("s_barrier")
        gemv_tile(RING[st], 16+4*st, st == 0)
    a("v_and_b32 v32, 8, v2\nv_cmp_ne_u32 vcc, 0, v32")
    for b in range(2):
        for e in range(8):
            a(f"v_cndmask_b32 v{16+b*8+e}, v{O+4*e+b}, v{O+4*e+2+b}, vcc")
    for k in range(16):
        a(f"v_add_f32_dpp v{16+k}, v{16+k}, v{16+k} row_ror:8 row_mask:0xf bank_mask:0xf")
    for k in range(16): a(f"v_min_u32 v{16+k}, -2, v{16+k}")
def unit_publish(bstride):
    a(f"""
s_add_u32 s9, s8, {bstride}
v_lshlrev_b32 v32, 5, v2
s_mov_b64 exec, 0xff
buffer_store_dwordx4 v[16:19], v32, {WS}, s8 offen {SCB}
buffer_store_dwordx4 v[20:23], v32, {WS}, s8 offen offset:16 {SCB}
buffer_store_dwordx4 v[24:27], v32, {WS}, s9 offen {SCB}
buffer_store_dwordx4 v[28:31], v32, {WS}, s9 offen offset:16 {SCB}
s_mov_b64 exec, -1
""")

a.label("L_qunit")
a(f"""
s_setprio 3
s_lshr_b32 s15, s62, 2
s_mul_i32 s9, s15, {144*8192}
s_lshl_b32 s8, s4, 9
s_add_u32 s8, s8, s9
s_and_b32 s9, s62, 3
s_lshl_b32 s9, s9, 7
s_add_u32 s8, s8, s9
""")
unit_addr(8192)
a(f"""
s_mov_b32 s46, 2304
s_mov_b32 s47, 0x20000
s_mov_b32 s50, {576*8192}
s_mov_b32 s51, 0x20000
s_mov_b32 s54, 0x40000000
s_mov_b32 s55, 0x20000
s_waitcnt lgkmcnt(0)
s_mov_b32 s44, s16
s_mov_b32 s45, s17
s_mov_b32 s48, s22
s_mov_b32 s49, s23
s_mov_b32 s52, s40
s_mov_b32 s53, s41
""")
if OPT['early']: tile_ptrs()
a("s_barrier")
vm = VM()
unit_issue(vm, 8192)
if OPT['early']: tile_issue(vm, False)
stamp(1)
unit_compute(vm, 's15', holdbar=True, st2=2)
def body():
    a(f"v_mov_b32 v33, {L_FLAG}\nds_read_b32 v34, v33\ns_waitcnt lgkmcnt(0)\nv_readfirstlane_b32 s8, v34\ns_cmp_eq_u32 s8, 1")
spin("rst1", body, "s_cbranch_scc1")
a(f"""
s_and_b32 s8, s62, 3
s_lshl_b32 s8, s8, 8
s_lshl_b32 s9, s15, 10
s_add_u32 s8, s8, s9
s_lshl_b32 s9, s4, 13
s_add_u32 s8, s8, s9
s_add_u32 s8, s8, {W_Q}
""")
unit_publish(4096)
stamp(3)
a("s_barrier\ns_branch L_aux2")

a.label("L_aux23")
a(f"""
s_mov_b32 s71, 0
s_cmp_eq_u32 s3, 2
s_cbranch_scc0 L_aux3sel
s_cmp_lt_u32 {CS}, 7
s_cselect_b32 s71, 1, 0
s_branch L_auxsel_done
""")
a.label("L_aux3sel")
a(f"s_mov_b32 s64, s65\ns_cmp_lt_u32 {CS}, 2\ns_cselect_b32 s71, 1, 0")
a.label("L_auxsel_done")
h_item('s64', 's15', 's70')
a(f"""
s_mul_i32 s8, s15, {144*9216}
s_lshl_b32 s9, s70, 7
s_add_u32 s8, s8, s9
""")
unit_addr(9216)
a(f"""
s_mov_b32 s46, 2304
s_mov_b32 s47, 0x20000
s_mov_b32 s50, {576*9216}
s_cmp_eq_u32 s71, 0
s_cselect_b32 s50, 0, s50
s_cselect_b32 s46, 0, s46
s_mov_b32 s51, 0x20000
s_mov_b32 s54, 0x40000000
s_mov_b32 s55, 0x20000
s_waitcnt lgkmcnt(0)
s_mov_b32 s44, s16
s_mov_b32 s45, s17
s_mov_b32 s48, s28
s_mov_b32 s49, s29
s_mov_b32 s52, s40
s_mov_b32 s53, s41
""")
if OPT['early']: tile_ptrs()
a("s_barrier")
vm23 = VM()
if OPT['hearly'] == 2: unit_issue(vm23, 9216)
if OPT['early']: tile_issue(vm23, False)
a("s_barrier")
if OPT['hearly'] == 1: unit_issue(vm23, 9216)
a("s_barrier")
if OPT['hearly'] == 0:
    a("s_cmp_eq_u32 s71, 0\ns_cbranch_scc1 L_aux2")
    unit_issue(vm23, 9216)
a("s_cmp_eq_u32 s71, 0\ns_cbranch_scc1 L_aux2")
unit_compute(vm23, 's15')
a(f"""
s_mul_i32 s8, s15, 36864
s_lshl_b32 s9, s70, 8
s_add_u32 s8, s8, s9
s_add_u32 s8, s8, {W_H}
""")
unit_publish(18432)
a("s_branch L_aux2")

a.label("L_att_main")
stamp(1)
a("s_barrier")
stamp(2)
a(f"""
v_and_b32 v6, 1, v2
v_lshlrev_b32 v6, 8, v6
v_lshl_add_u32 v6, v3, 4, v6
""")
for jj in range(4): a(f"ds_read_b128 {vr(Q+jj*4)}, v6 offset:{L_Q+jj*64}")
for k in range(32): a(f"v_mov_b32 v{O+k}, 0")
a("v_mov_b32 v8, 0xff800000\nv_mov_b32 v9, 0\nv_mov_b32 v10, 0\ns_waitcnt lgkmcnt(0)")
def p_qk_mfma(K):
    for jj in range(4):
        for t in range(2):
            D = vr((S0, S1)[t])
            a(f"v_mfma_f32_16x16x32_bf16 {D}, {vr(K+(t*4+jj)*4)}, {vr(Q+jj*4)}, {'0' if jj == 0 else D}")
def p_soft():
    uid[0] += 1
    a(f"v_max3_f32 v11, v{S0}, v{S0+1}, v{S0+2}")
    a(f"v_max3_f32 v11, v11, v{S0+3}, v{S1}")
    a(f"v_max3_f32 v11, v11, v{S1+1}, v{S1+2}")
    a(f"v_max3_f32 v11, v11, v{S1+3}, v8")
    xreduce(11, 12, "v_max_f32")
    a(f"v_cmp_gt_f32 vcc, v11, v8")
    a(f"s_cbranch_vccz L_nors{uid[0]}")
    a(f"v_sub_f32 v12, v8, v11\nv_mul_f32 v12, {SC}, v12\nv_exp_f32 v12, v12\nv_mov_b32 v8, v11")
    a(f"v_mul_f32 v10, {SC}, v11\nv_sub_f32 v10, 0, v10")
    a("v_mul_f32 v9, v9, v12")
    for k in range(32): a(f"v_mul_f32 v{O+k}, v{O+k}, v12")
    a.label(f"L_nors{uid[0]}")
    for e in range(8): a(f"v_fma_f32 v{S0+e}, v{S0+e}, {SC}, v10")
    for e in range(8): a(f"v_exp_f32 v{S0+e}, v{S0+e}")
    for jj in range(4): a(f"v_cvt_pk_bf16_f32 v{P+jj}, v{S0+2*jj}, v{S0+2*jj+1}")
    a(f"v_add_f32 v12, v{S0}, v{S0+1}\nv_add_f32 v13, v{S0+2}, v{S0+3}\nv_add_f32 v14, v{S0+4}, v{S0+5}\nv_add_f32 v15, v{S0+6}, v{S0+7}")
    a("v_add_f32 v12, v12, v13\nv_add_f32 v14, v14, v15\nv_add_f32 v9, v9, v12\nv_add_f32 v9, v9, v14")
def p_pv(V):
    perm_mfma(V, lambda e, X: a(f"v_mfma_f32_16x16x32_bf16 {vr(O+e*4)}, {vr(X)}, {vr(P)}, {vr(O+e*4)}"))
def process(slot, prefetch, wK, wV, claim=False, dynoff=False, drain=None):
    K = KB[slot]; V = VB[slot]
    a(f"s_waitcnt vmcnt({wK})")
    if dynoff: a(f"v_readfirstlane_b32 s8, v{224+slot}")
    p_qk_mfma(K)
    if dynoff:
        NS = OPT['dyn']
        a(f"""
s_and_b32 s9, s8, 7
s_lshl_b32 s9, s9, 20
s_bfe_u32 s10, s8, 0x20003
s_lshl_b32 s10, s10, 13
s_add_u32 s9, s9, s10
s_lshr_b32 s10, s8, 5
s_add_u32 s10, s10, {NS}
s_lshl_b32 s10, s10, 15
s_add_u32 s10, s10, s67
s_and_b32 s10, s10, 0xf8000
s_add_u32 s56, s9, s10
s_add_u32 s57, s56, 4096
s_cmp_lt_u32 s8, {32*(32-NS)}
s_cselect_b32 s{64+slot}, 1, 0
s_cbranch_scc0 {drain}
""")
    if claim:
        a(f"s_mov_b64 exec, 1\nv_mov_b32 v{224+slot}, 1\nbuffer_atomic_add v{224+slot}, v226, {WS}, s62 offen sc0 sc1\ns_mov_b64 exec, -1")
    LATE = OPT['late']
    if prefetch and not LATE: issueK(slot)
    p_soft()
    if LATE and prefetch: wV -= 8
    a(f"s_waitcnt vmcnt({wV})")
    p_pv(V)
    if prefetch:
        if LATE: issueK(slot)
        issueV(slot)
        if not dynoff: advance()
stamp(3)
if not OPT['dyn']:
    a("s_mov_b32 s61, 15")
    a.label("L_att_loop")
    process(0, True, 24, 24); process(1, True, 24, 24)
    a("s_sub_u32 s61, s61, 1\ns_cmp_lg_u32 s61, 0\ns_cbranch_scc1 L_att_loop")
    process(0, False, 24, 16); process(1, False, 8, 0)
else:
    NS = OPT['dyn']
    assert NS % 2 == 0
    a(f"s_mov_b32 s61, {(NS-4)//2}\ns_mov_b32 s64, 1\ns_mov_b32 s65, 1")
    a.label("L_att_loop")
    process(0, True, 24, 24); process(1, True, 24, 24)
    a("s_sub_u32 s61, s61, 1\ns_cmp_lg_u32 s61, 0\ns_cbranch_scc1 L_att_loop")
    process(0, True, 24, 25, claim=True)
    process(1, True, 25, 26, claim=True)
    a.label("L_dyn_loop")
    process(0, True, 25, 26, claim=True, dynoff=True, drain="L_drain0")
    process(1, True, 25, 26, claim=True, dynoff=True, drain="L_drain1")
    a("s_branch L_dyn_loop")
    for sl in range(2):
        a.label(f"L_drain{sl}")
        p_soft(); a("s_waitcnt vmcnt(17)"); p_pv(VB[sl])
        a(f"s_cmp_eq_u32 s{64+(sl^1)}, 0\ns_cbranch_scc1 L_dyn_done")
        a("s_waitcnt vmcnt(8)"); p_qk_mfma(KB[sl^1]); p_soft(); a("s_waitcnt vmcnt(0)"); p_pv(VB[sl^1])
        if sl == 0: a("s_branch L_dyn_done")
    a.label("L_dyn_done")
stamp(4)
xreduce(9, 12, "v_add_f32")
a(f"""
s_lshl_b32 s8, s3, 10
v_and_b32 v6, 1, v2
v_lshlrev_b32 v6, 9, v6
v_lshl_add_u32 v6, v3, 7, v6
v_add_u32 v6, s8, v6
s_lshl_b32 s8, s3, 4
v_lshlrev_b32 v7, 3, v2
v_add_u32 v7, s8, v7
v_add_u32 v6, {L_AO}, v6
s_mov_b32 exec_lo, 0x00030003
s_mov_b32 exec_hi, 0x00030003
""")
for r in range(4):
    for e in range(0, 8, 2):
        a(f"ds_write2_b32 v6, v{O+4*e+r}, v{O+4*(e+1)+r} offset0:{r*8+e} offset1:{r*8+e+1}")
a(f"s_mov_b64 exec, 3\nds_write_b64 v7, v[8:9] offset:{L_AML}")
a("s_waitcnt lgkmcnt(0)\ns_barrier")
if DBG:
    stamp(5)
    a("s_cmp_lg_u32 s3, 0\ns_cbranch_scc1 L_end")
    a("s_waitcnt lgkmcnt(0) vmcnt(0)\ns_mov_b64 exec, 1")
    a(f"s_lshl_b32 s12, s2, 8\ns_add_u32 s12, s12, {0x200000}\nv_mov_b32 v4, 0")
    for k in range(6):
        a(f"v_mov_b32 v5, s{72+2*k}\nbuffer_store_dword v5, v4, {WS}, s12 offen offset:{k*4}")
a("s_endpgm")

a.label("L_aux2")
if not OPT['early']:
    vmx = VM()
    tile_soffs(); tile_ptrs()
    tile_voffs()
    a("s_cmp_eq_u32 s3, 0\ns_cbranch_scc0 L_lt1")
    tile_issue(vmx, True)
    a("s_branch L_lt2")
    a.label("L_lt1")
    tile_issue(VM(), False)
    a.label("L_lt2")
for _ in range(OPT['hdelay']): a("s_sleep 127")
a("s_waitcnt vmcnt(0)")
WX = 160
for i in range(4):
    for hlf, sel in enumerate((SEL_LO, SEL_HI)):
        for jj in range(4):
            a(f"v_perm_b32 v{WX + (2*i+hlf)*4 + jj}, v{R_WO+(2*jj+1)*4+i}, v{R_WO+(2*jj)*4+i}, {sel}")
a("v_lshlrev_b32 v4, 4, v2")
def body():
    a("global_load_dword v30, v4, s[38:39] sc1\ns_waitcnt vmcnt(0)\nv_cmp_gt_u32 vcc, 16, v30")
spin("all", body, "s_cbranch_vccz", OPT["slowsleep"])
a(f"""
v_lshrrev_b32 v4, 5, v0
v_mul_u32_u24 v4, 18432, v4
v_and_b32 v5, 31, v0
v_lshl_add_u32 v4, v5, 2, v4
s_lshl_b32 s8, s63, 2
s_add_u32 s8, s8, {W_H}
s_add_u32 s9, s8, 36864
s_add_u32 s10, s8, {2*36864}
s_add_u32 s11, s8, {3*36864}
s_mov_b32 s48, s30
s_mov_b32 s49, s31
s_mov_b32 s50, 9216
s_mov_b32 s51, 0x20000
v_lshlrev_b32 v6, 1, v5
s_lshl_b32 s13, s63, 1
buffer_load_ushort v24, v6, s[48:51], s13 offen
buffer_load_ushort v25, v6, s[48:51], s13 offen offset:256
v_add_u32 v7, 512, v4
v_cmp_gt_u32 vcc, 16, v5
v_mov_b32 v26, 0x40000000
v_cndmask_b32 v7, v26, v7, vcc
s_cmp_eq_u32 s3, 0
s_cselect_b32 s13, 0, 0x40000000
v_add_u32 v7, s13, v7
""")
def body():
    for rg, so in enumerate(('s8', 's9', 's10', 's11')):
        a(f"buffer_load_dword v{16+rg}, v4, {WS}, {so} offen {SCB}")
    for rg, so in enumerate(('s8', 's9', 's10', 's11')):
        a(f"buffer_load_dword v{20+rg}, v7, {WS}, {so} offen {SCB}")
    a("s_waitcnt vmcnt(0)")
    anyinvalid(26, range(16, 24))
spin("h", body, "s_cbranch_vccz", OPT["slowsleep"])
def h_finish(p, b1, dst):
    a(f"""
v_add_f32 v{p}, v{p}, v{p+1}
v_add_f32 v{p+2}, v{p+2}, v{p+3}
v_add_f32 v{p}, v{p}, v{p+2}
v_lshlrev_b32 v{b1}, 16, v{b1}
v_cvt_pk_bf16_f32 v{p}, v{p}, v{p}
v_lshlrev_b32 v{p}, 16, v{p}
v_add_f32 v{p}, v{p}, v{b1}
v_cvt_pk_bf16_f32 v{p}, v{p}, v{p}
v_lshlrev_b32 v{p}, 16, v{p}
v_max_f32 v{p}, 0, v{p}
v_mul_f32 v{p}, v{p}, v{p}
v_cvt_pk_bf16_f32 v{dst}, v{p}, v{p}
""")
h_finish(16, 24, 26); h_finish(20, 25, 27)
a(f"""
s_lshl_b32 s13, s3, 9
s_add_u32 s13, s13, {L_OB}
v_lshl_add_u32 v6, v0, 1, s13
ds_write_b16 v6, v26
ds_write_b16 v6, v27 offset:128
v_and_b32 v7, 1, v2
v_lshlrev_b32 v7, 6, v7
v_lshl_add_u32 v7, v3, 4, v7
v_add_u32 v7, s13, v7
s_waitcnt lgkmcnt(0)
ds_read_b128 v[16:19], v7
ds_read_b128 v[20:23], v7 offset:128
s_waitcnt lgkmcnt(0)
""")
gemv_tile(R_W2, 16, True)
a("s_cmp_eq_u32 s3, 0\ns_cbranch_scc0 L_no_x2")
gemv_tile(R_X, 20, False)
a.label("L_no_x2")
stamp(4)
a(f"s_cmp_lg_u32 s3, 1\ns_cbranch_scc1 L_nobase\ns_lshl_b32 s8, {CS}, 1\ns_cmp_lg_u32 s8, s4\ns_cbranch_scc1 L_nobase")
a(f"""
s_mov_b32 s48, s34
s_mov_b32 s49, s35
s_mov_b32 s50, 1152
s_mov_b32 s51, 0x20000
s_lshl_b32 s8, {CS}, 7
v_and_b32 v5, 31, v0
v_lshlrev_b32 v5, 3, v5
buffer_load_dwordx2 v[24:25], v5, s[48:51], s8 offen
s_mul_i32 s9, s5, 1152
s_add_u32 s8, s8, s9
s_mov_b32 s44, s16
s_mov_b32 s45, s17
s_mov_b32 s46, 2304
s_mov_b32 s47, 0x20000
buffer_load_dwordx2 v[26:27], v5, s[44:47], s8 offen
s_waitcnt vmcnt(0)
""")
for k in range(2):
    a(f"""
v_lshlrev_b32 v{28+2*k}, 16, v{24+k}
v_and_b32 v{29+2*k}, 0xffff0000, v{24+k}
v_lshlrev_b32 v46, 16, v{26+k}
v_and_b32 v47, 0xffff0000, v{26+k}
v_add_f32 v{28+2*k}, v{28+2*k}, v46
v_add_f32 v{29+2*k}, v{29+2*k}, v47
""")
a.label("L_nobase")
stamp(5)
a(f"""
v_lshrrev_b32 v4, 5, v0
v_lshlrev_b32 v5, 11, v4
v_lshlrev_b32 v4, 17, v4
v_and_b32 v6, 31, v0
v_lshl_add_u32 v4, v6, 2, v4
s_lshl_b32 s8, s4, 13
s_lshl_b32 s9, s5, 9
s_add_u32 s8, s8, s9
s_lshl_b32 s9, s3, 7
s_add_u32 s8, s8, s9
s_add_u32 s9, s8, 4096
s_lshl_b32 s10, s4, 7
s_lshl_b32 s11, s5, 6
s_add_u32 s10, s10, s11
s_add_u32 s10, s10, {W_ML}
s_barrier
""")
stamp(6)
a("s_cmp_lg_u32 s3, 0\ns_cbranch_scc1 L_l1")
a(f"""
v_lshlrev_b32 v6, 4, v0
v_lshrrev_b32 v7, 5, v0
v_lshlrev_b32 v7, 3, v7
""")
for w in range(4):
    a(f"ds_read_b128 {vr(96+4*w)}, v6 offset:{L_AO + w*1024}")
    a(f"ds_read_b64 v[{112+2*w}:{113+2*w}], v7 offset:{L_AML + w*16}")
a(f"""
s_lshl_b32 s12, s7, 13
s_lshl_b32 s13, s6, 10
s_add_u32 s12, s12, s13
s_lshl_b32 s13, s7, 7
s_lshl_b32 s14, s6, 3
s_add_u32 s13, s13, s14
s_add_u32 s13, s13, {W_ML}
v_lshlrev_b32 v7, 1, v0
s_waitcnt lgkmcnt(0)
v_max3_f32 v120, v112, v114, v116
v_max_f32 v120, v120, v118
""")
for w in range(4): a(f"v_sub_f32 v{122+w}, v{112+2*w}, v120")
for w in range(4): a(f"v_mul_f32 v{122+w}, {SC}, v{122+w}")
for w in range(4): a(f"v_exp_f32 v{122+w}, v{122+w}")
a("v_mul_f32 v121, v122, v113")
for k in range(4): a(f"v_mul_f32 v{128+k}, v122, v{96+k}")
for w in range(1, 4):
    a(f"v_fmac_f32 v121, v{122+w}, v{113+2*w}")
    for k in range(4): a(f"v_fmac_f32 v{128+k}, v{122+w}, v{96+4*w+k}")
for k in range(4): a(f"v_min_u32 v{128+k}, -2, v{128+k}")
a(f"""
v_min_u32 v120, -2, v120
v_min_u32 v121, -2, v121
buffer_store_dwordx4 v[128:131], v6, {WS}, s12 offen {SCB}
s_mov_b32 exec_lo, 1
s_mov_b32 exec_hi, 1
buffer_store_dwordx2 v[120:121], v7, {WS}, s13 offen {SCB}
s_mov_b64 exec, -1
""")
a.label("L_l1")
LB = [96, 192]
def l1_issue(k):
    b = LB[k]
    for s_ in range(8):
        a(f"buffer_load_dword v{b+s_}, v4, {WS}, {'s8' if s_ < 4 else 's9'} offen offset:{(s_%4)*1024} {SCB}")
    for kk in range(4):
        a(f"buffer_load_dwordx4 {vr(b+8+4*kk)}, v5, {WS}, s10 offen offset:{kk*16} {SCB}")
def l1_post(k):
    b = LB[k]; m = b + 8
    stamp(7)
    a(f"v_max3_f32 v120, v{m}, v{m+2}, v{m+4}\nv_max3_f32 v120, v120, v{m+6}, v{m+8}\nv_max3_f32 v120, v120, v{m+10}, v{m+12}\nv_max_f32 v120, v120, v{m+14}")
    for s_ in range(8): a(f"v_sub_f32 v{122+s_}, v{m+2*s_}, v120")
    for s_ in range(8): a(f"v_mul_f32 v{122+s_}, {SC}, v{122+s_}")
    for s_ in range(8): a(f"v_exp_f32 v{122+s_}, v{122+s_}")
    a(f"v_mul_f32 v121, v122, v{m+1}\nv_mul_f32 v130, v122, v{b}")
    for s_ in range(1, 8):
        a(f"v_fmac_f32 v121, v{122+s_}, v{m+1+2*s_}\nv_fmac_f32 v130, v{122+s_}, v{b+s_}")
a(f"""
s_lshl_b32 s13, s3, 9
s_add_u32 s13, s13, {L_OB}
v_lshl_add_u32 v6, v0, 1, s13
v_and_b32 v7, 1, v2
v_lshlrev_b32 v7, 6, v7
v_lshl_add_u32 v7, v3, 4, v7
v_add_u32 v7, s13, v7
""")
if OPT['pp']:
    spin2("l1", l1_issue, 12, lambda k: anyinvalid(120, range(LB[k], LB[k]+24)), l1_post, OPT['ppsleep'])
else:
    def body():
        l1_issue(0); a("s_waitcnt vmcnt(0)"); anyinvalid(120, range(96, 120))
    spin("l1", body, "s_cbranch_vccz")
    l1_post(0)
a(f"""
v_rcp_f32 v121, v121
v_mul_f32 v130, v130, v121
v_cvt_pk_bf16_f32 v130, v130, v130
ds_write_b16 v6, v130
s_waitcnt lgkmcnt(0)
ds_read_b128 v[132:135], v7
s_waitcnt lgkmcnt(0)
""")
for e in range(8):
    D = vr(O+4*e)
    a(f"v_mfma_f32_16x16x32_bf16 {D}, {vr(132)}, {vr(WX+e*4)}, {D}")
a(f"s_lshl_b32 s12, s3, 10\ns_add_u32 s12, s12, {L_YP}\nv_lshl_add_u32 v6, v2, 5, s12\ns_mov_b64 exec, 0xffff")
for b in range(2):
    for e in range(0, 8, 2):
        a(f"ds_write2_b32 v6, v{O+4*e+b}, v{O+4*(e+1)+b} offset0:{b*128+e} offset1:{b*128+e+1}")
a("s_mov_b64 exec, -1\ns_waitcnt lgkmcnt(0)\ns_barrier")
stamp(8)
a("s_cmp_eq_u32 s3, 1\ns_cbranch_scc1 L_final\ns_cmp_lg_u32 s3, 0\ns_cbranch_scc1 L_endaux")
a("v_lshlrev_b32 v6, 4, v0")
for w in range(4): a(f"ds_read_b128 {vr(136+4*w)}, v6 offset:{L_YP + w*1024}")
a(f"""
s_lshl_b32 s13, {CS}, 15
s_lshl_b32 s14, s4, 10
s_add_u32 s13, s13, s14
s_lshl_b32 s14, s5, 9
s_add_u32 s13, s13, s14
s_add_u32 s13, s13, {W_Y}
v_lshrrev_b32 v11, 5, v0
v_lshlrev_b32 v11, 14, v11
v_and_b32 v7, 31, v0
v_lshl_add_u32 v11, v7, 4, v11
s_mov_b32 s14, 0x0000ffff
s_cmp_eq_u32 {CS}, 7
s_cselect_b32 s14, -1, s14
s_waitcnt lgkmcnt(0)
""")
for k in range(4):
    a(f"v_add_f32 v{136+k}, v{136+k}, v{140+k}\nv_add_f32 v{144+k}, v{144+k}, v{148+k}")
for k in range(4):
    a(f"v_add_f32 v{136+k}, v{136+k}, v{144+k}")
for k in range(4): a(f"v_min_u32 v{136+k}, -2, v{136+k}")
a(f"""
s_mov_b32 exec_lo, s14
s_mov_b32 exec_hi, s14
buffer_store_dwordx4 v[136:139], v11, {WS}, s13 offen {SCB}
s_branch L_endaux
""")
a.label("L_final")
a(f"""
s_lshl_b32 s8, {CS}, 1
s_cmp_lg_u32 s8, s4
s_cbranch_scc1 L_endaux
s_lshl_b32 s8, {CS}, 15
s_lshl_b32 s9, s5, 14
s_add_u32 s8, s8, s9
s_add_u32 s8, s8, {W_Y}
s_add_u32 s9, s8, 4096
v_lshrrev_b32 v4, 5, v0
v_lshlrev_b32 v4, 13, v4
v_and_b32 v5, 31, v0
v_lshl_add_u32 v4, v5, 4, v4
s_mov_b32 s14, 0x0000ffff
s_cmp_eq_u32 {CS}, 7
s_cselect_b32 s14, -1, s14
s_mov_b32 exec_lo, s14
s_mov_b32 exec_hi, s14
""")
FB = [96, 192]
def f_issue(k):
    for kk in range(16):
        a(f"buffer_load_dwordx4 {vr(FB[k]+4*kk)}, v4, {WS}, {'s8' if kk < 8 else 's9'} offen offset:{(kk%8)*512} {SCB}")
def f_post(k):
    b = FB[k]
    for st in (1, 2, 4):
        for kk in range(0, 16, 2*st):
            for c in range(4):
                a(f"v_add_f32 v{b+4*kk+c}, v{b+4*kk+c}, v{b+4*(kk+st)+c}")
    for c in range(4): a(f"v_add_f32 v{164+c}, v{b+c}, v{b+32+c}")
if OPT['pp']:
    spin2("fin", f_issue, 16, lambda k: anyinvalid(160, range(FB[k], FB[k]+64)), f_post, OPT['ppsleep'])
else:
    def body():
        f_issue(0); a("s_waitcnt vmcnt(0)"); anyinvalid(160, range(96, 160))
    spin("fin", body, "s_cbranch_vccz")
    f_post(0)
a("s_mov_b64 exec, -1")
for c in range(4): xswap32(164+c, 160+c, "v_add_f32")
for c in range(4): a(f"v_add_f32 v{164+c}, v{164+c}, v{28+c}")
a(f"""
v_cvt_pk_bf16_f32 v168, v164, v165
v_cvt_pk_bf16_f32 v169, v166, v167
s_mov_b32 s48, s36
s_mov_b32 s49, s37
s_mov_b32 s50, 2304
s_mov_b32 s51, 0x20000
s_lshl_b32 s8, {CS}, 7
s_mul_i32 s9, s5, 1152
s_add_u32 s8, s8, s9
v_lshlrev_b32 v5, 3, v5
s_mov_b32 exec_lo, s14
s_mov_b32 exec_hi, 0
buffer_store_dwordx2 v[168:169], v5, s[48:51], s8 offen
""")
a.label("L_endaux")
if DBG:
    stamp(9)
    a("s_waitcnt lgkmcnt(0) vmcnt(0)\ns_mov_b64 exec, 1")
    a(f"s_lshl_b32 s12, s2, 9\ns_lshl_b32 s13, s3, 6\ns_add_u32 s12, s12, s13\ns_add_u32 s12, s12, {0x280000}\nv_mov_b32 v4, 0")
    for k in range(10):
        a(f"v_mov_b32 v5, s{72+2*k}\nbuffer_store_dword v5, v4, {WS}, s12 offen offset:{k*4}")
a.label("L_end")
a("s_endpgm")

ref = open('cdna_kernels/' + NAME + '.s.ref').read().split('\n')
hdr = [l for l in ref if l.startswith(';') and '@launch' not in l]
out = "\n".join(hdr) + f"\n; @launch grid=(256,1,1) block=(512,1,1) lds={LDS_BYTES}\n"
out += f""".amdgcn_target "amdgcn-amd-amdhsa--gfx950"
.text
.globl {NAME}_kernel
.p2align 8
.type {NAME}_kernel,@function
{NAME}_kernel:
""" + a.text() + f""".section .rodata,"a"
.p2align 6
.amdhsa_kernel {NAME}_kernel
  .amdhsa_next_free_vgpr 256
  .amdhsa_next_free_sgpr 102
  .amdhsa_accum_offset 256
  .amdhsa_group_segment_fixed_size 0
  .amdhsa_kernarg_size 104
  .amdhsa_user_sgpr_count 2
  .amdhsa_user_sgpr_kernarg_segment_ptr 1
  .amdhsa_system_sgpr_workgroup_id_x 1
.end_amdhsa_kernel
"""
open(sys.argv[1], 'w').write(out)
print("lines", len(a.lines), "nops", a.nops)
```

```python
import sys, struct, math
from asmlib import *
NAME = "parallel_sum__gqa_block_cached__dense_activation_squared_relu__decode"
def f32(x): return struct.unpack('<I', struct.pack('<f', x))[0]
OPT = dict(nt='nt', wnt='nt', dbg=0, spin=0x10000, hold=1, slowsleep=16, dyn=30, sc='sc0_sc1', rot=1, early=0, hdelay=0, nofam=0, holdx=0, rotm=5, late=0, hearly=2, pp=0, ppsleep=10, qsleep=24, outsc=0, k3=0, mimic=1)
for arg in sys.argv[2:]:
    k, v = arg.split('='); assert k in OPT, k; OPT[k] = v if not v.lstrip('-').isdigit() else int(v)
CSCALE = f32(math.log2(math.e)) if OPT['mimic'] else f32((128 ** -0.5) * math.log2(math.e))
NT = OPT['nt']; WNT = OPT['wnt']; DBG = OPT['dbg']; SPIN = OPT['spin']; SCB = OPT['sc'].replace('_', ' ')
L_Q = 0x0000
L_FLAG = 0x0200
L_YP = 0x0400
L_AO = 0x1400
L_AML = 0x2400
L_OB = 0x2500
L_XN = 0x2D00
LDS_BYTES = 0x5D00
W_O = 0; W_ML = 0x40000; W_CTR = 0x44000; W_Q = 0x48000; W_H = 0x68000; W_Y = 0x90000
a = Asm()
class VM:
    def __init__(s): s.q = []
    def issue(s, tag): s.q.append(tag)
    def wait(s, tag):
        idx = max(i for i, t in enumerate(s.q) if t == tag)
        n = len(s.q) - 1 - idx
        assert n <= 63
        a(f"s_waitcnt vmcnt({n})"); s.q = s.q[idx+1:]
def stamp(k):
    if DBG: a(f"s_memrealtime s[{72+2*k}:{73+2*k}]")
def vr(b, n=4): return f"v[{b}:{b+n-1}]"
S0, S1, P, XA, XB, O = 32, 36, 40, 48, 56, 64
Q = 16
KB = [96, 128]; VB = [160, 192]
SEL_LO, SEL_HI, SC = 's59', 's60', 's58'
WS = 's[52:55]'
CS = 's61'
def xswap16(v, t, op):
    a(f"v_mov_b32 v{t}, v{v}\nv_permlane16_swap_b32 v{v}, v{t}\n{op} v{v}, v{v}, v{t}")
def xswap32(v, t, op):
    a(f"v_mov_b32 v{t}, v{v}\nv_permlane32_swap_b32 v{v}, v{t}\n{op} v{v}, v{v}, v{t}")
def xreduce(v, t, op): xswap16(v, t, op); xswap32(v, t, op)
def rowreduce(v, op):
    for m in ("quad_perm:[1,0,3,2]", "quad_perm:[2,3,0,1]", "row_half_mirror", "row_mirror"):
        a(f"{op}_dpp v{v}, v{v}, v{v} {m} row_mask:0xf bank_mask:0xf")
def perm_mfma(base, fn):
    for i in range(4):
        X = XA if i % 2 == 0 else XB
        for jj in range(4):
            a(f"v_perm_b32 v{X+jj}, v{base+(2*jj+1)*4+i}, v{base+(2*jj)*4+i}, {SEL_LO}")
        for jj in range(4):
            a(f"v_perm_b32 v{X+4+jj}, v{base+(2*jj+1)*4+i}, v{base+(2*jj)*4+i}, {SEL_HI}")
        for hlf in range(2): fn(2*i+hlf, X+4*hlf)
def gemv_tile(base, A, first):
    perm_mfma(base, lambda e, X: a(f"v_mfma_f32_16x16x32_bf16 {vr(O+e*4)}, {vr(A)}, {vr(X)}, {'0' if first else vr(O+e*4)}"))
uid = [0]
def spin(name, body, okcond_branch, sleep=1):
    a(f"s_mov_b32 s12, {SPIN}")
    a.label(f"L_{name}_poll")
    body()
    a(f"{okcond_branch} L_{name}_ok")
    a(f"s_sleep {sleep}\ns_sub_u32 s12, s12, 1\ns_cmp_lg_u32 s12, 0\ns_cbranch_scc1 L_{name}_poll")
    a.label(f"L_{name}_ok")
def spin2(name, issue, nloads, check, post, sleep):
    a(f"s_mov_b32 s12, {SPIN}")
    issue(0)
    a(f"s_sleep {sleep}")
    a.label(f"L_{name}_poll")
    issue(1)
    a(f"s_waitcnt vmcnt({nloads})")
    check(0)
    a(f"s_cbranch_vccz L_{name}_ok0")
    issue(0)
    a(f"s_waitcnt vmcnt({nloads})")
    check(1)
    a(f"s_cbranch_vccz L_{name}_ok1")
    a(f"s_sub_u32 s12, s12, 1\ns_cmp_lg_u32 s12, 0\ns_cbranch_scc1 L_{name}_poll")
    a.label(f"L_{name}_ok1")
    post(1)
    a(f"s_branch L_{name}_done")
    a.label(f"L_{name}_ok0")
    post(0)
    a.label(f"L_{name}_done")
def anyinvalid(dst, regs):
    regs = list(regs)
    a(f"v_max3_u32 v{dst}, v{regs[0]}, v{regs[1]}, v{regs[2]}")
    rest = regs[3:]
    while len(rest) >= 2:
        a(f"v_max3_u32 v{dst}, v{dst}, v{rest[0]}, v{rest[1]}"); rest = rest[2:]
    if rest: a(f"v_max_u32 v{dst}, v{dst}, v{rest[0]}")
    a(f"v_cmp_eq_u32 vcc, -1, v{dst}")

a(f"""
s_cmp_ge_u32 s2, 256
s_cbranch_scc1 L_end
s_load_dwordx16 s[16:31], s[0:1], 0
s_load_dwordx8 s[32:39], s[0:1], 64
s_load_dwordx2 s[40:41], s[0:1], 96
v_lshrrev_b32 v1, 6, v0
v_and_b32 v0, 63, v0
v_readfirstlane_b32 s3, v1
s_lshr_b32 s7, s2, 3
s_and_b32 s6, s2, 7
s_and_b32 s4, s7, 15
s_lshr_b32 s5, s7, 4
v_and_b32 v2, 15, v0
v_lshrrev_b32 v3, 4, v0
{"s_memrealtime s[72:73]" if DBG else ""}
s_mov_b32 {SEL_LO}, 0x05040100
s_mov_b32 {SEL_HI}, 0x07060302
s_mov_b32 {SC}, {CSCALE:#x}
s_cmp_ge_u32 s3, 4
s_cbranch_scc1 L_aux
""")
a(f"""
v_lshlrev_b32 v4, 8, v2
v_lshl_add_u32 v4, v3, 4, v4
v_lshlrev_b32 v5, 10, v3
v_lshl_add_u32 v5, v2, 4, v5
s_lshl_b32 s8, s7, 23
s_lshl_b32 s9, s6, 20
s_lshl_b32 s66, s3, 13
s_add_u32 s66, s66, s9
s_mul_i32 s63, s7, {OPT['rotm']}
s_and_b32 s63, s63, 31
s_lshl_b32 s63, s63, 15
s_mov_b32 s67, s63
s_add_u32 s56, s66, s63
s_add_u32 s57, s56, 4096
s_mov_b32 s46, 0x800000
s_mov_b32 s47, 0x20000
s_mov_b32 s50, 0x800000
s_mov_b32 s51, 0x20000
s_mov_b32 s54, 0x40000000
s_mov_b32 s55, 0x20000
s_lshl_b32 s62, s7, 8
s_add_u32 s62, s62, {W_CTR}
v_mov_b32 v226, 0
s_mov_b32 s69, {f32(128 ** -0.5):#x}
s_waitcnt lgkmcnt(0)
s_mov_b32 s52, s40
s_mov_b32 s53, s41
s_add_u32 s44, s18, s8
s_addc_u32 s45, s19, 0
s_add_u32 s48, s20, s8
s_addc_u32 s49, s21, 0
s_barrier
s_barrier
""")
def issueKb(base, so=56):
    for j in range(8):
        t, jj = j >> 2, j & 3
        a(f"buffer_load_dwordx4 {vr(base+(t*4+jj)*4)}, v4, s[44:47], s{so+t} offen offset:{jj*64} {NT}")
def issueK(slot): issueKb(KB[slot])
def issueV(slot):
    for j in range(8):
        t, r = j >> 2, j & 3
        a(f"buffer_load_dwordx4 {vr(VB[slot]+(t*4+r)*4)}, v5, s[48:51], s{56+t} offen offset:{r*256} {NT}")
def advance():
    a("s_add_u32 s63, s63, 0x8000\ns_and_b32 s63, s63, 0xf8000\ns_add_u32 s56, s66, s63\ns_add_u32 s57, s56, 4096")
for slot in range(2):
    issueK(slot); issueV(slot); advance()
KX = 224
if OPT['k3']: issueKb(KX)
a("s_branch L_att_main")

def h_item(sid, srg, slc):
    a(f"""
s_cmp_ge_u32 {sid}, 72
s_cselect_b32 {srg}, 1, 0
s_cmp_ge_u32 {sid}, 144
s_cselect_b32 {srg}, 2, {srg}
s_cmp_ge_u32 {sid}, 216
s_cselect_b32 {srg}, 3, {srg}
s_mul_i32 {slc}, {srg}, 72
s_sub_u32 {slc}, {sid}, {slc}
""")
TV = 36
R_WO, R_W2, R_X = 224, 192, 128
def tile_voffs():
    a(f"v_mul_u32_u24 v{TV}, {8*1152}, v3\nv_lshl_add_u32 v{TV}, v2, 4, v{TV}")
    for j in range(1, 8): a(f"v_add_u32 v{TV+j}, {j*1152}, v{TV}")
def tile_soffs():
    a(f"""
s_lshl_b32 s10, s4, 8
s_lshl_b32 s11, s5, 7
s_add_u32 s10, s10, s11
s_lshl_b32 s11, s3, 5
s_add_u32 s10, s10, s11
s_mul_i32 s66, s10, 1152
s_lshl_b32 s11, {CS}, 7
s_add_u32 s66, s66, s11
s_mul_i32 s10, s4, 288
s_mul_i32 s14, s5, 144
s_add_u32 s10, s10, s14
s_lshl_b32 s14, s3, 5
s_add_u32 s63, s10, s14
s_mul_i32 s67, s63, 1152
s_add_u32 s67, s67, s11
s_mov_b32 s68, 0x00ff00ff
s_cmp_eq_u32 {CS}, 7
s_cselect_b32 s68, -1, s68
s_mov_b32 s69, s68
s_mov_b32 s94, {4096*1152}
s_mov_b32 s95, 0x20000
s_mov_b32 s98, {4608*1152}
s_mov_b32 s99, 0x20000
""")
def tile_ptrs():
    a("s_mov_b32 s92, s24\ns_mov_b32 s93, s25\ns_mov_b32 s96, s32\ns_mov_b32 s97, s33")
def tile_issue(vm, extra):
    a("s_mov_b64 exec, s[68:69]")
    for j in range(8):
        a(f"buffer_load_dwordx4 {vr(R_WO+j*4)}, v{TV+j}, s[92:95], s66 offen {WNT}"); vm.issue('wo')
    for j in range(8):
        a(f"buffer_load_dwordx4 {vr(R_W2+j*4)}, v{TV+j}, s[96:99], s67 offen {WNT}"); vm.issue('w2')
    if extra:
        a(f"s_mov_b64 exec, -1\nv_mov_b32 v44, 0x40000000\nv_cmp_gt_u32 vcc, 32, v0\ns_add_u32 s14, s67, {128*1152}\ns_mov_b64 exec, s[68:69]")
        for j in range(8):
            a(f"v_cndmask_b32 v45, v44, v{TV+j}, vcc\nbuffer_load_dwordx4 {vr(R_X+j*4)}, v45, s[96:99], s14 offen {WNT}"); vm.issue('wx')
    a("s_mov_b64 exec, -1")
a.label("L_aux")
a(f"""
s_sub_u32 s3, s3, 4
s_lshl_b32 s62, s5, 3
s_add_u32 s62, s62, s6
s_add_u32 {CS}, s6, {"s4" if OPT['rot'] else "0"}
s_and_b32 {CS}, {CS}, 7
s_lshl_b32 s64, {CS}, 5
s_add_u32 s64, s64, s7
s_add_u32 s65, s64, 224
""")
if OPT['early']: tile_voffs(); tile_soffs()
a("s_cmp_eq_u32 s3, 1\ns_cbranch_scc1 L_qunit\ns_setprio 2\ns_cmp_lg_u32 s3, 0\ns_cbranch_scc1 L_aux23")
a(f"""
v_mov_b32 v4, 0
v_mov_b32 v5, {L_FLAG}
ds_write_b32 v5, v4
v_mov_b32 v24, -1
v_mov_b32 v25, -1
v_mov_b32 v26, -1
v_mov_b32 v27, -1
""")
h_item('s64', 's10', 's11')
a(f"""
s_mul_i32 s10, s10, 36864
s_lshl_b32 s11, s11, 8
s_add_u32 s10, s10, s11
s_add_u32 s10, s10, {W_H}
""")
h_item('s65', 's11', 's13')
a(f"""
s_mul_i32 s11, s11, 36864
s_lshl_b32 s13, s13, 8
s_add_u32 s11, s11, s13
s_add_u32 s11, s11, {W_H}
s_and_b32 s8, s62, 3
s_lshl_b32 s8, s8, 8
s_lshr_b32 s9, s62, 2
s_lshl_b32 s9, s9, 10
s_add_u32 s8, s8, s9
s_lshl_b32 s9, s4, 13
s_add_u32 s8, s8, s9
s_add_u32 s8, s8, {W_Q}
v_and_b32 v6, 1, v3
v_lshlrev_b32 v7, 4, v2
v_lshl_add_u32 v8, v6, 12, v7
v_add_u32 v8, s8, v8
v_mul_u32_u24 v9, 18432, v6
v_add_u32 v9, v9, v7
v_add_u32 v10, s11, v9
v_add_u32 v9, s10, v9
v_cmp_gt_u32 vcc, 32, v0
v_cndmask_b32 v9, v9, v8, vcc
s_lshl_b32 s13, {CS}, 15
s_lshl_b32 s14, s4, 10
s_add_u32 s13, s13, s14
s_lshl_b32 s14, s5, 9
s_add_u32 s13, s13, s14
s_add_u32 s13, s13, {W_Y}
v_lshrrev_b32 v11, 5, v0
v_lshlrev_b32 v11, 14, v11
v_and_b32 v6, 31, v0
v_lshl_add_u32 v11, v6, 4, v11
s_lshl_b32 s8, s7, 13
s_lshl_b32 s9, s6, 10
s_add_u32 s8, s8, s9
v_lshlrev_b32 v12, 4, v0
s_lshl_b32 s9, s7, 7
s_lshl_b32 s14, s6, 3
s_add_u32 s9, s9, s14
s_add_u32 s9, s9, {W_ML}
v_lshlrev_b32 v13, 6, v0
s_mov_b32 s70, -1
s_cmp_eq_u32 {CS}, 7
s_cselect_b32 s70, 0, s70
s_mov_b32 s54, 0x40000000
s_mov_b32 s55, 0x20000
s_waitcnt lgkmcnt(0)
s_mov_b32 s52, s40
s_mov_b32 s53, s41
s_mov_b32 exec_hi, s70
buffer_store_dwordx4 v[24:27], v9, {WS}, 0 offen {SCB}
s_mov_b64 exec, -1
buffer_store_dwordx4 v[24:27], v12, {WS}, s8 offen {SCB}
buffer_store_dwordx4 v[24:27], v11, {WS}, s13 offen {SCB}
s_mov_b64 exec, 3
buffer_store_dwordx2 v[24:25], v13, {WS}, s9 offen {SCB}
s_cmp_lg_u32 s6, 0
s_cbranch_scc1 L_noctr
s_mov_b64 exec, 1
v_mov_b32 v28, 0
s_lshl_b32 s14, s7, 8
s_add_u32 s14, s14, {W_CTR}
buffer_store_dword v28, v28, {WS}, s14 offen {SCB}
L_noctr:
s_cmp_lt_u32 {CS}, 2
s_cbranch_scc0 L_noh2reset
s_mov_b32 exec_hi, 0
s_mov_b32 exec_lo, -1
buffer_store_dwordx4 v[24:27], v10, {WS}, 0 offen {SCB}
""")
a.label("L_noh2reset")
a("s_mov_b64 exec, -1")
if OPT['early']: tile_ptrs()
a("s_barrier")
vm = VM()
if OPT['early']:
    tile_issue(vm, True)
    nyoung = len(vm.q)
else: nyoung = 0
a(f"""
{"s_barrier" if OPT['holdx'] else ""}
s_mov_b64 exec, 1
s_lshl_b32 s11, s4, 4
v_mov_b32 v14, s11
v_mov_b32 v15, 1
s_waitcnt vmcnt({nyoung})
global_atomic_add v14, v15, s[38:39] sc1
ds_write_b32 v5, v15
{"s_barrier" if not OPT['holdx'] else ""}
""")
stamp(1)
def body():
    a("global_load_dword v16, v14, s[38:39] sc1\ns_waitcnt vmcnt(0)\nv_readfirstlane_b32 s8, v16\ns_cmp_ge_u32 s8, 16")
if not OPT['nofam']: spin("fam", body, "s_cbranch_scc1")
stamp(2)
a(f"""
s_mov_b64 exec, -1
s_lshl_b32 s8, s4, 13
s_lshl_b32 s9, s5, 12
s_add_u32 s8, s8, s9
s_add_u32 s8, s8, {W_Q}
""")
QB = [16, 96]
def q_issue(k):
    for rg in range(4):
        a(f"buffer_load_dwordx4 {vr(QB[k]+4*rg)}, v12, {WS}, s8 offen offset:{rg*1024} {SCB}")
def q_post(k):
    b = QB[k]
    for c in range(4):
        a(f"v_add_f32 v{b+c}, v{b+c}, v{b+4+c}\nv_add_f32 v{b+8+c}, v{b+8+c}, v{b+12+c}\nv_add_f32 v{b+c}, v{b+c}, v{b+8+c}")
    a(f"""
v_cvt_pk_bf16_f32 v34, v{b}, v{b+1}
v_cvt_pk_bf16_f32 v35, v{b+2}, v{b+3}
v_lshlrev_b32 v33, 3, v0
ds_write_b64 v33, v[34:35] offset:{L_Q}
""")
if OPT['pp']:
    spin2("q", q_issue, 4, lambda k: anyinvalid(32, range(QB[k], QB[k]+16)), q_post, OPT['qsleep'])
else:
    def body():
        q_issue(0); a("s_waitcnt vmcnt(0)"); anyinvalid(32, range(16, 32))
    spin("q", body, "s_cbranch_vccz")
    q_post(0)
a("s_waitcnt lgkmcnt(0)")
stamp(3)
a("s_barrier\ns_branch L_aux2")

T0, T1, T2, T3, T4, T5, T6, T7 = 46, 47, 48, 49, 50, 51, 52, 53
def layernorm(vm):
    vm.wait('x')
    for k in range(10):
        a(f"v_lshlrev_b32 v{26+2*k}, 16, v{16+k}\nv_and_b32 v{27+2*k}, 0xffff0000, v{16+k}")
    a(f"v_add_f32 v{T0}, v26, v27\nv_add_f32 v{T1}, v28, v29")
    for k in range(4, 20, 2): a(f"v_add_f32 v{T0}, v{T0}, v{26+k}\nv_add_f32 v{T1}, v{T1}, v{27+k}")
    a(f"v_add_f32 v{T0}, v{T0}, v{T1}")
    rowreduce(T0, "v_add_f32"); xswap16(T0, T1, "v_add_f32")
    a(f"v_mul_f32 v{T0}, {f32(1.0/576):#x}, v{T0}")
    a(f"v_and_b32 v{T1}, 16, v0\nv_cmp_eq_u32 vcc, 0, v{T1}\nv_mov_b32 v{T2}, 0\nv_mov_b32 v{T4}, 0")
    for k in range(0, 20, 2):
        a(f"v_sub_f32 v{T3}, v{26+k}, v{T0}\nv_sub_f32 v{T5}, v{27+k}, v{T0}")
        if k >= 16: a(f"v_cndmask_b32 v{T3}, 0, v{T3}, vcc\nv_cndmask_b32 v{T5}, 0, v{T5}, vcc")
        a(f"v_fmac_f32 v{T2}, v{T3}, v{T3}\nv_fmac_f32 v{T4}, v{T5}, v{T5}")
    a(f"v_add_f32 v{T2}, v{T2}, v{T4}")
    rowreduce(T2, "v_add_f32"); xswap16(T2, T1, "v_add_f32")
    a(f"""
v_mul_f32 v{T2}, {f32(1.0/576):#x}, v{T2}
v_cvt_pk_bf16_f32 v{T1}, v{T0}, v{T2}
v_lshlrev_b32 v{T0}, 16, v{T1}
v_and_b32 v{T2}, 0xffff0000, v{T1}
v_add_f32 v{T2}, {f32(1e-5):#x}, v{T2}
v_cvt_pk_bf16_f32 v{T2}, v{T2}, v{T2}
v_lshlrev_b32 v{T2}, 16, v{T2}
v_sqrt_f32 v{T2}, v{T2}
v_cvt_pk_bf16_f32 v{T2}, v{T2}, v{T2}
v_lshlrev_b32 v{T2}, 16, v{T2}
v_rcp_f32 v{T2}, v{T2}
""")
    for k in range(10):
        t0, t1 = (T4, T5) if k % 2 == 0 else (T6, T7)
        a(f"v_sub_f32 v{t0}, v{26+2*k}, v{T0}\nv_sub_f32 v{t1}, v{27+2*k}, v{T0}")
        a(f"v_cvt_pk_bf16_f32 v{t0}, v{t0}, v{t1}")
        a(f"v_and_b32 v{t1}, 0xffff0000, v{t0}\nv_lshlrev_b32 v{t0}, 16, v{t0}")
        a(f"v_mul_f32 v{t0}, v{t0}, v{T2}\nv_mul_f32 v{t1}, v{t1}, v{T2}")
        a(f"v_cvt_pk_bf16_f32 v{16+k}, v{t0}, v{t1}")
    a(f"""
s_mul_i32 s13, s3, 3072
s_add_u32 s13, s13, {L_XN}
v_lshrrev_b32 v{T6}, 5, v0
v_mul_u32_u24 v{T6}, 1536, v{T6}
v_and_b32 v{T7}, 31, v0
v_lshl_add_u32 v{T6}, v{T7}, 3, v{T6}
v_add_u32 v{T6}, s13, v{T6}
""")
    for i in range(5): a(f"ds_write_b64 v{T6}, v[{16+2*i}:{17+2*i}] offset:{i*256}")
RING = [96, 128, 160]
def unit_addr(stride):
    a(f"""
v_lshrrev_b32 v6, 5, v0
v_mul_u32_u24 v6, 1152, v6
v_and_b32 v7, 31, v0
v_lshl_add_u32 v6, v7, 3, v6
v_add_u32 v7, 0x400, v6
v_and_b32 v8, 16, v0
v_cmp_eq_u32 vcc, 0, v8
v_mov_b32 v9, 0x40000000
v_cndmask_b32 v7, v9, v7, vcc
v_lshrrev_b32 v8, 3, v2
v_mul_u32_u24 v8, 72, v8
v_lshl_add_u32 v8, v3, 3, v8
v_mul_u32_u24 v8, {stride}, v8
v_and_b32 v10, 7, v2
v_lshl_add_u32 v8, v10, 4, v8
v_add_u32 v8, s8, v8
v_cmp_gt_u32 vcc, 16, v0
v_cndmask_b32 v5, v9, v8, vcc
""")
def unit_issue(vm, stride):
    for i in range(4):
        a(f"buffer_load_dwordx2 v[{16+2*i}:{17+2*i}], v6, s[44:47], 0 offen offset:{i*256}"); vm.issue('x')
    a("buffer_load_dwordx2 v[24:25], v7, s[44:47], 0 offen"); vm.issue('x')
    for j in range(1, 8): a(f"v_add_u32 v{8+j}, {stride}, v{8+j-1}")
    for st in range(3):
        if st == 2:
            a("v_mov_b32 v8, v5")
            for j in range(1, 8): a(f"v_add_u32 v{8+j}, {stride}, v{8+j-1}")
        a(f"s_mov_b32 s10, {st*32*stride}")
        for j in range(8):
            a(f"buffer_load_dwordx4 {vr(RING[st]+j*4)}, v{8+j}, s[48:51], s10 offen {WNT}"); vm.issue(('w', st))
def unit_compute(vm, srg, holdbar=False, st2=None):
    if holdbar and OPT['holdx'] == 2: a("s_barrier")
    if holdbar and OPT['holdx'] == 1:
        vm.wait('x'); vm.q.insert(0, 'x'); a("s_barrier")
    layernorm(vm)
    a(f"""
v_and_b32 v{T6}, 1, v2
v_mul_u32_u24 v{T6}, 1536, v{T6}
v_bfe_u32 v{T7}, v2, 1, 1
v_mul_u32_u24 v{T7}, 144, v{T7}
v_add_u32 v{T6}, v{T6}, v{T7}
v_lshl_add_u32 v{T6}, v3, 4, v{T6}
s_mul_i32 s9, {srg}, 288
s_add_u32 s9, s9, s13
v_add_u32 v{T6}, s9, v{T6}
s_waitcnt lgkmcnt(0)
""")
    for st in range(3): a(f"ds_read_b128 {vr(16+4*st)}, v{T6} offset:{st*64}")
    if st2 is not None: stamp(st2)
    a("s_waitcnt lgkmcnt(0)")
    for st in range(3):
        vm.wait(('w', st))
        if st == 2 and holdbar and OPT['holdx'] == 0: a("s_barrier")
        gemv_tile(RING[st], 16+4*st, st == 0)
    a("v_and_b32 v32, 8, v2\nv_cmp_ne_u32 vcc, 0, v32")
    for b in range(2):
        for e in range(8):
            a(f"v_cndmask_b32 v{16+b*8+e}, v{O+4*e+b}, v{O+4*e+2+b}, vcc")
    for k in range(16):
        a(f"v_add_f32_dpp v{16+k}, v{16+k}, v{16+k} row_ror:8 row_mask:0xf bank_mask:0xf")
    for k in range(16): a(f"v_min_u32 v{16+k}, -2, v{16+k}")
def unit_publish(bstride):
    a(f"""
s_add_u32 s9, s8, {bstride}
v_lshlrev_b32 v32, 5, v2
s_mov_b64 exec, 0xff
buffer_store_dwordx4 v[16:19], v32, {WS}, s8 offen {SCB}
buffer_store_dwordx4 v[20:23], v32, {WS}, s8 offen offset:16 {SCB}
buffer_store_dwordx4 v[24:27], v32, {WS}, s9 offen {SCB}
buffer_store_dwordx4 v[28:31], v32, {WS}, s9 offen offset:16 {SCB}
s_mov_b64 exec, -1
""")

a.label("L_qunit")
a(f"""
s_setprio 3
s_lshr_b32 s15, s62, 2
s_mul_i32 s9, s15, {144*8192}
s_lshl_b32 s8, s4, 9
s_add_u32 s8, s8, s9
s_and_b32 s9, s62, 3
s_lshl_b32 s9, s9, 7
s_add_u32 s8, s8, s9
""")
unit_addr(8192)
a(f"""
s_mov_b32 s46, 2304
s_mov_b32 s47, 0x20000
s_mov_b32 s50, {576*8192}
s_mov_b32 s51, 0x20000
s_mov_b32 s54, 0x40000000
s_mov_b32 s55, 0x20000
s_waitcnt lgkmcnt(0)
s_mov_b32 s44, s16
s_mov_b32 s45, s17
s_mov_b32 s48, s22
s_mov_b32 s49, s23
s_mov_b32 s52, s40
s_mov_b32 s53, s41
""")
if OPT['early']: tile_ptrs()
a("s_barrier")
vm = VM()
unit_issue(vm, 8192)
if OPT['early']: tile_issue(vm, False)
stamp(1)
unit_compute(vm, 's15', holdbar=True, st2=2)
def body():
    a(f"v_mov_b32 v33, {L_FLAG}\nds_read_b32 v34, v33\ns_waitcnt lgkmcnt(0)\nv_readfirstlane_b32 s8, v34\ns_cmp_eq_u32 s8, 1")
spin("rst1", body, "s_cbranch_scc1")
a(f"""
s_and_b32 s8, s62, 3
s_lshl_b32 s8, s8, 8
s_lshl_b32 s9, s15, 10
s_add_u32 s8, s8, s9
s_lshl_b32 s9, s4, 13
s_add_u32 s8, s8, s9
s_add_u32 s8, s8, {W_Q}
""")
unit_publish(4096)
stamp(3)
a("s_barrier\ns_branch L_aux2")

a.label("L_aux23")
a(f"""
s_mov_b32 s71, 0
s_cmp_eq_u32 s3, 2
s_cbranch_scc0 L_aux3sel
s_cmp_lt_u32 {CS}, 7
s_cselect_b32 s71, 1, 0
s_branch L_auxsel_done
""")
a.label("L_aux3sel")
a(f"s_mov_b32 s64, s65\ns_cmp_lt_u32 {CS}, 2\ns_cselect_b32 s71, 1, 0")
a.label("L_auxsel_done")
h_item('s64', 's15', 's70')
a(f"""
s_mul_i32 s8, s15, {144*9216}
s_lshl_b32 s9, s70, 7
s_add_u32 s8, s8, s9
""")
unit_addr(9216)
a(f"""
s_mov_b32 s46, 2304
s_mov_b32 s47, 0x20000
s_mov_b32 s50, {576*9216}
s_cmp_eq_u32 s71, 0
s_cselect_b32 s50, 0, s50
s_cselect_b32 s46, 0, s46
s_mov_b32 s51, 0x20000
s_mov_b32 s54, 0x40000000
s_mov_b32 s55, 0x20000
s_waitcnt lgkmcnt(0)
s_mov_b32 s44, s16
s_mov_b32 s45, s17
s_mov_b32 s48, s28
s_mov_b32 s49, s29
s_mov_b32 s52, s40
s_mov_b32 s53, s41
""")
if OPT['early']: tile_ptrs()
a("s_barrier")
vm23 = VM()
if OPT['hearly'] == 2: unit_issue(vm23, 9216)
if OPT['early']: tile_issue(vm23, False)
a("s_barrier")
if OPT['hearly'] == 1: unit_issue(vm23, 9216)
a("s_barrier")
if OPT['hearly'] == 0:
    a("s_cmp_eq_u32 s71, 0\ns_cbranch_scc1 L_aux2")
    unit_issue(vm23, 9216)
a("s_cmp_eq_u32 s71, 0\ns_cbranch_scc1 L_aux2")
unit_compute(vm23, 's15')
a(f"""
s_mul_i32 s8, s15, 36864
s_lshl_b32 s9, s70, 8
s_add_u32 s8, s8, s9
s_add_u32 s8, s8, {W_H}
""")
unit_publish(18432)
a("s_branch L_aux2")

a.label("L_att_main")
stamp(1)
a("s_barrier")
stamp(2)
a(f"""
v_and_b32 v6, 1, v2
v_lshlrev_b32 v6, 8, v6
v_lshl_add_u32 v6, v3, 4, v6
""")
for jj in range(4): a(f"ds_read_b128 {vr(Q+jj*4)}, v6 offset:{L_Q+jj*64}")
for k in range(32): a(f"v_mov_b32 v{O+k}, 0")
a("v_mov_b32 v8, 0xff800000\nv_mov_b32 v9, 0\nv_mov_b32 v10, 0\ns_waitcnt lgkmcnt(0)")
def p_qk_mfma(K):
    for jj in range(4):
        for t in range(2):
            D = vr((S0, S1)[t])
            a(f"v_mfma_f32_16x16x32_bf16 {D}, {vr(K+(t*4+jj)*4)}, {vr(Q+jj*4)}, {'0' if jj == 0 else D}")
def p_soft():
    uid[0] += 1
    if OPT['mimic']:
        for jj in range(4): a(f"v_cvt_pk_bf16_f32 v{P+jj}, v{S0+2*jj}, v{S0+2*jj+1}")
        for jj in range(4): a(f"v_lshlrev_b32 v{S0+2*jj}, 16, v{P+jj}\nv_and_b32 v{S0+2*jj+1}, 0xffff0000, v{P+jj}")
        for e in range(8): a(f"v_mul_f32 v{S0+e}, s69, v{S0+e}")
        for jj in range(4): a(f"v_cvt_pk_bf16_f32 v{P+jj}, v{S0+2*jj}, v{S0+2*jj+1}")
        for jj in range(4): a(f"v_lshlrev_b32 v{S0+2*jj}, 16, v{P+jj}\nv_and_b32 v{S0+2*jj+1}, 0xffff0000, v{P+jj}")
    a(f"v_max3_f32 v11, v{S0}, v{S0+1}, v{S0+2}")
    a(f"v_max3_f32 v11, v11, v{S0+3}, v{S1}")
    a(f"v_max3_f32 v11, v11, v{S1+1}, v{S1+2}")
    a(f"v_max3_f32 v11, v11, v{S1+3}, v8")
    xreduce(11, 12, "v_max_f32")
    a(f"v_cmp_gt_f32 vcc, v11, v8")
    a(f"s_cbranch_vccz L_nors{uid[0]}")
    a(f"v_sub_f32 v12, v8, v11\nv_mul_f32 v12, {SC}, v12\nv_exp_f32 v12, v12\nv_mov_b32 v8, v11")
    a(f"v_mul_f32 v10, {SC}, v11\nv_sub_f32 v10, 0, v10")
    a("v_mul_f32 v9, v9, v12")
    for k in range(32): a(f"v_mul_f32 v{O+k}, v{O+k}, v12")
    a.label(f"L_nors{uid[0]}")
    for e in range(8): a(f"v_fma_f32 v{S0+e}, v{S0+e}, {SC}, v10")
    for e in range(8): a(f"v_exp_f32 v{S0+e}, v{S0+e}")
    for jj in range(4): a(f"v_cvt_pk_bf16_f32 v{P+jj}, v{S0+2*jj}, v{S0+2*jj+1}")
    a(f"v_add_f32 v12, v{S0}, v{S0+1}\nv_add_f32 v13, v{S0+2}, v{S0+3}\nv_add_f32 v14, v{S0+4}, v{S0+5}\nv_add_f32 v15, v{S0+6}, v{S0+7}")
    a("v_add_f32 v12, v12, v13\nv_add_f32 v14, v14, v15\nv_add_f32 v9, v9, v12\nv_add_f32 v9, v9, v14")
def p_pv(V):
    perm_mfma(V, lambda e, X: a(f"v_mfma_f32_16x16x32_bf16 {vr(O+e*4)}, {vr(X)}, {vr(P)}, {vr(O+e*4)}"))
def kslot(slot): return slot ^ 1 if OPT['k3'] else slot
def process(slot, prefetch, wK, wV, claim=False, dynoff=False, drain=None):
    K = KB[kslot(slot)]; V = VB[slot]
    a(f"s_waitcnt vmcnt({wK})")
    if dynoff: a(f"v_readfirstlane_b32 s8, v{224+slot}")
    p_qk_mfma(K)
    if dynoff:
        NS = OPT['dyn']
        a(f"""
s_and_b32 s9, s8, 7
s_lshl_b32 s9, s9, 20
s_bfe_u32 s10, s8, 0x20003
s_lshl_b32 s10, s10, 13
s_add_u32 s9, s9, s10
s_lshr_b32 s10, s8, 5
s_add_u32 s10, s10, {NS}
s_lshl_b32 s10, s10, 15
s_add_u32 s10, s10, s67
s_and_b32 s10, s10, 0xf8000
s_add_u32 s56, s9, s10
s_add_u32 s57, s56, 4096
s_cmp_lt_u32 s8, {32*(32-NS)}
s_cselect_b32 s{64+slot}, 1, 0
s_cbranch_scc0 {drain}
""")
    if claim:
        a(f"s_mov_b64 exec, 1\nv_mov_b32 v{224+slot}, 1\nbuffer_atomic_add v{224+slot}, v226, {WS}, s62 offen sc0 sc1\ns_mov_b64 exec, -1")
    LATE = OPT['late']
    if prefetch and not LATE: issueK(kslot(slot))
    p_soft()
    if LATE and prefetch: wV -= 8
    a(f"s_waitcnt vmcnt({wV})")
    p_pv(V)
    if prefetch:
        if LATE: issueK(kslot(slot))
        issueV(slot)
        if not dynoff: advance()
stamp(3)
NPEEL = 0
if OPT['k3']:
    assert OPT['dyn'] and not OPT['late']
    NPEEL = 4
    def koff_next():
        a("s_add_u32 s68, s63, 0x8000\ns_and_b32 s68, s68, 0xf8000\ns_add_u32 s70, s66, s68\ns_add_u32 s71, s70, 4096")
    a("s_waitcnt vmcnt(32)"); p_qk_mfma(KB[0]); koff_next(); issueKb(KB[0], 70); p_soft(); a("s_waitcnt vmcnt(32)"); p_pv(VB[0]); issueV(0); advance()
    a("s_waitcnt vmcnt(32)"); p_qk_mfma(KB[1]); koff_next(); issueKb(KB[1], 70); p_soft(); a("s_waitcnt vmcnt(32)"); p_pv(VB[1]); issueV(1); advance()
    a("s_waitcnt vmcnt(32)"); p_qk_mfma(KX); p_soft(); a("s_waitcnt vmcnt(16)"); p_pv(VB[0]); issueV(0); advance()
    a("s_waitcnt vmcnt(24)"); p_qk_mfma(KB[0]); issueK(0); p_soft(); a("s_waitcnt vmcnt(16)"); p_pv(VB[1]); issueV(1); advance()
    a("v_mov_b32 v226, 0")
if not OPT['dyn']:
    a("s_mov_b32 s61, 15")
    a.label("L_att_loop")
    process(0, True, 24, 24); process(1, True, 24, 24)
    a("s_sub_u32 s61, s61, 1\ns_cmp_lg_u32 s61, 0\ns_cbranch_scc1 L_att_loop")
    process(0, False, 24, 16); process(1, False, 8, 0)
else:
    NS = OPT['dyn']
    assert NS % 2 == 0
    a(f"s_mov_b32 s61, {(NS-4-NPEEL)//2}\ns_mov_b32 s64, 1\ns_mov_b32 s65, 1")
    a.label("L_att_loop")
    process(0, True, 24, 24); process(1, True, 24, 24)
    a("s_sub_u32 s61, s61, 1\ns_cmp_lg_u32 s61, 0\ns_cbranch_scc1 L_att_loop")
    process(0, True, 24, 25, claim=True)
    process(1, True, 25, 26, claim=True)
    a.label("L_dyn_loop")
    process(0, True, 25, 26, claim=True, dynoff=True, drain="L_drain0")
    process(1, True, 25, 26, claim=True, dynoff=True, drain="L_drain1")
    a("s_branch L_dyn_loop")
    for sl in range(2):
        a.label(f"L_drain{sl}")
        p_soft(); a("s_waitcnt vmcnt(17)"); p_pv(VB[sl])
        a(f"s_cmp_eq_u32 s{64+(sl^1)}, 0\ns_cbranch_scc1 L_dyn_done")
        a("s_waitcnt vmcnt(8)"); p_qk_mfma(KB[kslot(sl^1)]); p_soft(); a("s_waitcnt vmcnt(0)"); p_pv(VB[sl^1])
        if sl == 0: a("s_branch L_dyn_done")
    a.label("L_dyn_done")
stamp(4)
xreduce(9, 12, "v_add_f32")
a(f"""
s_lshl_b32 s8, s3, 10
v_and_b32 v6, 1, v2
v_lshlrev_b32 v6, 9, v6
v_lshl_add_u32 v6, v3, 7, v6
v_add_u32 v6, s8, v6
s_lshl_b32 s8, s3, 4
v_lshlrev_b32 v7, 3, v2
v_add_u32 v7, s8, v7
v_add_u32 v6, {L_AO}, v6
s_mov_b32 exec_lo, 0x00030003
s_mov_b32 exec_hi, 0x00030003
""")
for r in range(4):
    for e in range(0, 8, 2):
        a(f"ds_write2_b32 v6, v{O+4*e+r}, v{O+4*(e+1)+r} offset0:{r*8+e} offset1:{r*8+e+1}")
a(f"s_mov_b64 exec, 3\nds_write_b64 v7, v[8:9] offset:{L_AML}")
a("s_waitcnt lgkmcnt(0)\ns_barrier")
if DBG:
    stamp(5)
    a("s_cmp_lg_u32 s3, 0\ns_cbranch_scc1 L_end")
    a("s_waitcnt lgkmcnt(0) vmcnt(0)\ns_mov_b64 exec, 1")
    a(f"s_lshl_b32 s12, s2, 8\ns_add_u32 s12, s12, {0x200000}\nv_mov_b32 v4, 0")
    for k in range(6):
        a(f"v_mov_b32 v5, s{72+2*k}\nbuffer_store_dword v5, v4, {WS}, s12 offen offset:{k*4}")
a("s_endpgm")

a.label("L_aux2")
if not OPT['early']:
    vmx = VM()
    tile_soffs(); tile_ptrs()
    tile_voffs()
    a("s_cmp_eq_u32 s3, 0\ns_cbranch_scc0 L_lt1")
    tile_issue(vmx, True)
    a("s_branch L_lt2")
    a.label("L_lt1")
    tile_issue(VM(), False)
    a.label("L_lt2")
for _ in range(OPT['hdelay']): a("s_sleep 127")
a("s_waitcnt vmcnt(0)")
WX = 160
for i in range(4):
    for hlf, sel in enumerate((SEL_LO, SEL_HI)):
        for jj in range(4):
            a(f"v_perm_b32 v{WX + (2*i+hlf)*4 + jj}, v{R_WO+(2*jj+1)*4+i}, v{R_WO+(2*jj)*4+i}, {sel}")
a("v_lshlrev_b32 v4, 4, v2")
def body():
    a("global_load_dword v30, v4, s[38:39] sc1\ns_waitcnt vmcnt(0)\nv_cmp_gt_u32 vcc, 16, v30")
spin("all", body, "s_cbranch_vccz", OPT["slowsleep"])
a(f"""
v_lshrrev_b32 v4, 5, v0
v_mul_u32_u24 v4, 18432, v4
v_and_b32 v5, 31, v0
v_lshl_add_u32 v4, v5, 2, v4
s_lshl_b32 s8, s63, 2
s_add_u32 s8, s8, {W_H}
s_add_u32 s9, s8, 36864
s_add_u32 s10, s8, {2*36864}
s_add_u32 s11, s8, {3*36864}
s_mov_b32 s48, s30
s_mov_b32 s49, s31
s_mov_b32 s50, 9216
s_mov_b32 s51, 0x20000
v_lshlrev_b32 v6, 1, v5
s_lshl_b32 s13, s63, 1
buffer_load_ushort v24, v6, s[48:51], s13 offen
buffer_load_ushort v25, v6, s[48:51], s13 offen offset:256
v_add_u32 v7, 512, v4
v_cmp_gt_u32 vcc, 16, v5
v_mov_b32 v26, 0x40000000
v_cndmask_b32 v7, v26, v7, vcc
s_cmp_eq_u32 s3, 0
s_cselect_b32 s13, 0, 0x40000000
v_add_u32 v7, s13, v7
""")
def body():
    for rg, so in enumerate(('s8', 's9', 's10', 's11')):
        a(f"buffer_load_dword v{16+rg}, v4, {WS}, {so} offen {SCB}")
    for rg, so in enumerate(('s8', 's9', 's10', 's11')):
        a(f"buffer_load_dword v{20+rg}, v7, {WS}, {so} offen {SCB}")
    a("s_waitcnt vmcnt(0)")
    anyinvalid(26, range(16, 24))
spin("h", body, "s_cbranch_vccz", OPT["slowsleep"])
def h_finish(p, b1, dst):
    a(f"""
v_add_f32 v{p}, v{p}, v{p+1}
v_add_f32 v{p+2}, v{p+2}, v{p+3}
v_add_f32 v{p}, v{p}, v{p+2}
v_lshlrev_b32 v{b1}, 16, v{b1}
v_cvt_pk_bf16_f32 v{p}, v{p}, v{p}
v_lshlrev_b32 v{p}, 16, v{p}
v_add_f32 v{p}, v{p}, v{b1}
v_cvt_pk_bf16_f32 v{p}, v{p}, v{p}
v_lshlrev_b32 v{p}, 16, v{p}
v_max_f32 v{p}, 0, v{p}
v_mul_f32 v{p}, v{p}, v{p}
v_cvt_pk_bf16_f32 v{dst}, v{p}, v{p}
""")
h_finish(16, 24, 26); h_finish(20, 25, 27)
a(f"""
s_lshl_b32 s13, s3, 9
s_add_u32 s13, s13, {L_OB}
v_lshl_add_u32 v6, v0, 1, s13
ds_write_b16 v6, v26
ds_write_b16 v6, v27 offset:128
v_and_b32 v7, 1, v2
v_lshlrev_b32 v7, 6, v7
v_lshl_add_u32 v7, v3, 4, v7
v_add_u32 v7, s13, v7
s_waitcnt lgkmcnt(0)
ds_read_b128 v[16:19], v7
ds_read_b128 v[20:23], v7 offset:128
s_waitcnt lgkmcnt(0)
""")
gemv_tile(R_W2, 16, True)
a("s_cmp_eq_u32 s3, 0\ns_cbranch_scc0 L_no_x2")
gemv_tile(R_X, 20, False)
a.label("L_no_x2")
stamp(4)
a(f"s_cmp_lg_u32 s3, 1\ns_cbranch_scc1 L_nobase\ns_lshl_b32 s8, {CS}, 1\ns_cmp_lg_u32 s8, s4\ns_cbranch_scc1 L_nobase")
a(f"""
s_mov_b32 s48, s34
s_mov_b32 s49, s35
s_mov_b32 s50, 1152
s_mov_b32 s51, 0x20000
s_lshl_b32 s8, {CS}, 7
v_and_b32 v5, 31, v0
v_lshlrev_b32 v5, 3, v5
buffer_load_dwordx2 v[24:25], v5, s[48:51], s8 offen
s_mul_i32 s9, s5, 1152
s_add_u32 s8, s8, s9
s_mov_b32 s44, s16
s_mov_b32 s45, s17
s_mov_b32 s46, 2304
s_mov_b32 s47, 0x20000
buffer_load_dwordx2 v[26:27], v5, s[44:47], s8 offen
s_waitcnt vmcnt(0)
""")
for k in range(2):
    a(f"""
v_lshlrev_b32 v{28+2*k}, 16, v{24+k}
v_and_b32 v{29+2*k}, 0xffff0000, v{24+k}
v_lshlrev_b32 v46, 16, v{26+k}
v_and_b32 v47, 0xffff0000, v{26+k}
v_add_f32 v{28+2*k}, v{28+2*k}, v46
v_add_f32 v{29+2*k}, v{29+2*k}, v47
""")
a.label("L_nobase")
stamp(5)
a(f"""
v_lshrrev_b32 v4, 5, v0
v_lshlrev_b32 v5, 11, v4
v_lshlrev_b32 v4, 17, v4
v_and_b32 v6, 31, v0
v_lshl_add_u32 v4, v6, 2, v4
s_lshl_b32 s8, s4, 13
s_lshl_b32 s9, s5, 9
s_add_u32 s8, s8, s9
s_lshl_b32 s9, s3, 7
s_add_u32 s8, s8, s9
s_add_u32 s9, s8, 4096
s_lshl_b32 s10, s4, 7
s_lshl_b32 s11, s5, 6
s_add_u32 s10, s10, s11
s_add_u32 s10, s10, {W_ML}
s_barrier
""")
stamp(6)
a("s_cmp_lg_u32 s3, 0\ns_cbranch_scc1 L_l1")
a(f"""
v_lshlrev_b32 v6, 4, v0
v_lshrrev_b32 v7, 5, v0
v_lshlrev_b32 v7, 3, v7
""")
for w in range(4):
    a(f"ds_read_b128 {vr(96+4*w)}, v6 offset:{L_AO + w*1024}")
    a(f"ds_read_b64 v[{112+2*w}:{113+2*w}], v7 offset:{L_AML + w*16}")
a(f"""
s_lshl_b32 s12, s7, 13
s_lshl_b32 s13, s6, 10
s_add_u32 s12, s12, s13
s_lshl_b32 s13, s7, 7
s_lshl_b32 s14, s6, 3
s_add_u32 s13, s13, s14
s_add_u32 s13, s13, {W_ML}
v_lshlrev_b32 v7, 1, v0
s_waitcnt lgkmcnt(0)
v_max3_f32 v120, v112, v114, v116
v_max_f32 v120, v120, v118
""")
for w in range(4): a(f"v_sub_f32 v{122+w}, v{112+2*w}, v120")
for w in range(4): a(f"v_mul_f32 v{122+w}, {SC}, v{122+w}")
for w in range(4): a(f"v_exp_f32 v{122+w}, v{122+w}")
a("v_mul_f32 v121, v122, v113")
for k in range(4): a(f"v_mul_f32 v{128+k}, v122, v{96+k}")
for w in range(1, 4):
    a(f"v_fmac_f32 v121, v{122+w}, v{113+2*w}")
    for k in range(4): a(f"v_fmac_f32 v{128+k}, v{122+w}, v{96+4*w+k}")
for k in range(4): a(f"v_min_u32 v{128+k}, -2, v{128+k}")
a(f"""
v_min_u32 v120, -2, v120
v_min_u32 v121, -2, v121
buffer_store_dwordx4 v[128:131], v6, {WS}, s12 offen {SCB}
s_mov_b32 exec_lo, 1
s_mov_b32 exec_hi, 1
buffer_store_dwordx2 v[120:121], v7, {WS}, s13 offen {SCB}
s_mov_b64 exec, -1
""")
a.label("L_l1")
LB = [96, 192]
def l1_issue(k):
    b = LB[k]
    for s_ in range(8):
        a(f"buffer_load_dword v{b+s_}, v4, {WS}, {'s8' if s_ < 4 else 's9'} offen offset:{(s_%4)*1024} {SCB}")
    for kk in range(4):
        a(f"buffer_load_dwordx4 {vr(b+8+4*kk)}, v5, {WS}, s10 offen offset:{kk*16} {SCB}")
def l1_post(k):
    b = LB[k]; m = b + 8
    stamp(7)
    a(f"v_max3_f32 v120, v{m}, v{m+2}, v{m+4}\nv_max3_f32 v120, v120, v{m+6}, v{m+8}\nv_max3_f32 v120, v120, v{m+10}, v{m+12}\nv_max_f32 v120, v120, v{m+14}")
    for s_ in range(8): a(f"v_sub_f32 v{122+s_}, v{m+2*s_}, v120")
    for s_ in range(8): a(f"v_mul_f32 v{122+s_}, {SC}, v{122+s_}")
    for s_ in range(8): a(f"v_exp_f32 v{122+s_}, v{122+s_}")
    a(f"v_mul_f32 v121, v122, v{m+1}\nv_mul_f32 v130, v122, v{b}")
    for s_ in range(1, 8):
        a(f"v_fmac_f32 v121, v{122+s_}, v{m+1+2*s_}\nv_fmac_f32 v130, v{122+s_}, v{b+s_}")
a(f"""
s_lshl_b32 s13, s3, 9
s_add_u32 s13, s13, {L_OB}
v_lshl_add_u32 v6, v0, 1, s13
v_and_b32 v7, 1, v2
v_lshlrev_b32 v7, 6, v7
v_lshl_add_u32 v7, v3, 4, v7
v_add_u32 v7, s13, v7
""")
if OPT['pp']:
    spin2("l1", l1_issue, 12, lambda k: anyinvalid(120, range(LB[k], LB[k]+24)), l1_post, OPT['ppsleep'])
else:
    def body():
        l1_issue(0); a("s_waitcnt vmcnt(0)"); anyinvalid(120, range(96, 120))
    spin("l1", body, "s_cbranch_vccz")
    l1_post(0)
a(f"""
v_rcp_f32 v121, v121
v_mul_f32 v130, v130, v121
v_cvt_pk_bf16_f32 v130, v130, v130
ds_write_b16 v6, v130
s_waitcnt lgkmcnt(0)
ds_read_b128 v[132:135], v7
s_waitcnt lgkmcnt(0)
""")
for e in range(8):
    D = vr(O+4*e)
    a(f"v_mfma_f32_16x16x32_bf16 {D}, {vr(132)}, {vr(WX+e*4)}, {D}")
a(f"s_lshl_b32 s12, s3, 10\ns_add_u32 s12, s12, {L_YP}\nv_lshl_add_u32 v6, v2, 5, s12\ns_mov_b64 exec, 0xffff")
for b in range(2):
    for e in range(0, 8, 2):
        a(f"ds_write2_b32 v6, v{O+4*e+b}, v{O+4*(e+1)+b} offset0:{b*128+e} offset1:{b*128+e+1}")
a("s_mov_b64 exec, -1\ns_waitcnt lgkmcnt(0)\ns_barrier")
stamp(8)
a("s_cmp_eq_u32 s3, 1\ns_cbranch_scc1 L_final\ns_cmp_lg_u32 s3, 0\ns_cbranch_scc1 L_endaux")
a("v_lshlrev_b32 v6, 4, v0")
for w in range(4): a(f"ds_read_b128 {vr(136+4*w)}, v6 offset:{L_YP + w*1024}")
a(f"""
s_lshl_b32 s13, {CS}, 15
s_lshl_b32 s14, s4, 10
s_add_u32 s13, s13, s14
s_lshl_b32 s14, s5, 9
s_add_u32 s13, s13, s14
s_add_u32 s13, s13, {W_Y}
v_lshrrev_b32 v11, 5, v0
v_lshlrev_b32 v11, 14, v11
v_and_b32 v7, 31, v0
v_lshl_add_u32 v11, v7, 4, v11
s_mov_b32 s14, 0x0000ffff
s_cmp_eq_u32 {CS}, 7
s_cselect_b32 s14, -1, s14
s_waitcnt lgkmcnt(0)
""")
for k in range(4):
    a(f"v_add_f32 v{136+k}, v{136+k}, v{140+k}\nv_add_f32 v{144+k}, v{144+k}, v{148+k}")
for k in range(4):
    a(f"v_add_f32 v{136+k}, v{136+k}, v{144+k}")
for k in range(4): a(f"v_min_u32 v{136+k}, -2, v{136+k}")
a(f"""
s_mov_b32 exec_lo, s14
s_mov_b32 exec_hi, s14
buffer_store_dwordx4 v[136:139], v11, {WS}, s13 offen {SCB}
s_branch L_endaux
""")
a.label("L_final")
a(f"""
s_lshl_b32 s8, {CS}, 1
s_cmp_lg_u32 s8, s4
s_cbranch_scc1 L_endaux
s_lshl_b32 s8, {CS}, 15
s_lshl_b32 s9, s5, 14
s_add_u32 s8, s8, s9
s_add_u32 s8, s8, {W_Y}
s_add_u32 s9, s8, 4096
v_lshrrev_b32 v4, 5, v0
v_lshlrev_b32 v4, 13, v4
v_and_b32 v5, 31, v0
v_lshl_add_u32 v4, v5, 4, v4
s_mov_b32 s14, 0x0000ffff
s_cmp_eq_u32 {CS}, 7
s_cselect_b32 s14, -1, s14
s_mov_b32 exec_lo, s14
s_mov_b32 exec_hi, s14
""")
FB = [96, 192]
def f_issue(k):
    for kk in range(16):
        a(f"buffer_load_dwordx4 {vr(FB[k]+4*kk)}, v4, {WS}, {'s8' if kk < 8 else 's9'} offen offset:{(kk%8)*512} {SCB}")
def f_post(k):
    b = FB[k]
    for st in (1, 2, 4):
        for kk in range(0, 16, 2*st):
            for c in range(4):
                a(f"v_add_f32 v{b+4*kk+c}, v{b+4*kk+c}, v{b+4*(kk+st)+c}")
    for c in range(4): a(f"v_add_f32 v{164+c}, v{b+c}, v{b+32+c}")
if OPT['pp']:
    spin2("fin", f_issue, 16, lambda k: anyinvalid(160, range(FB[k], FB[k]+64)), f_post, OPT['ppsleep'])
else:
    def body():
        f_issue(0); a("s_waitcnt vmcnt(0)"); anyinvalid(160, range(96, 160))
    spin("fin", body, "s_cbranch_vccz")
    f_post(0)
a("s_mov_b64 exec, -1")
for c in range(4): xswap32(164+c, 160+c, "v_add_f32")
for c in range(4): a(f"v_add_f32 v{164+c}, v{164+c}, v{28+c}")
a(f"""
v_cvt_pk_bf16_f32 v168, v164, v165
v_cvt_pk_bf16_f32 v169, v166, v167
s_mov_b32 s48, s36
s_mov_b32 s49, s37
s_mov_b32 s50, 2304
s_mov_b32 s51, 0x20000
s_lshl_b32 s8, {CS}, 7
s_mul_i32 s9, s5, 1152
s_add_u32 s8, s8, s9
v_lshlrev_b32 v5, 3, v5
s_mov_b32 exec_lo, s14
s_mov_b32 exec_hi, 0
buffer_store_dwordx2 v[168:169], v5, s[48:51], s8 offen {'sc0 sc1' if OPT['outsc'] else ''}
""")
a.label("L_endaux")
if DBG:
    stamp(9)
    a("s_waitcnt lgkmcnt(0) vmcnt(0)\ns_mov_b64 exec, 1")
    a(f"s_lshl_b32 s12, s2, 9\ns_lshl_b32 s13, s3, 6\ns_add_u32 s12, s12, s13\ns_add_u32 s12, s12, {0x280000}\nv_mov_b32 v4, 0")
    for k in range(10):
        a(f"v_mov_b32 v5, s{72+2*k}\nbuffer_store_dword v5, v4, {WS}, s12 offen offset:{k*4}")
a.label("L_end")
a("s_endpgm")

ref = open('cdna_kernels/' + NAME + '.s.ref').read().split('\n')
hdr = [l for l in ref if l.startswith(';') and '@launch' not in l]
out = "\n".join(hdr) + f"\n; @launch grid=(256,1,1) block=(512,1,1) lds={LDS_BYTES}\n"
out += f""".amdgcn_target "amdgcn-amd-amdhsa--gfx950"
.text
.globl {NAME}_kernel
.p2align 8
.type {NAME}_kernel,@function
{NAME}_kernel:
""" + a.text() + f""".section .rodata,"a"
.p2align 6
.amdhsa_kernel {NAME}_kernel
  .amdhsa_next_free_vgpr 256
  .amdhsa_next_free_sgpr 102
  .amdhsa_accum_offset 256
  .amdhsa_group_segment_fixed_size 0
  .amdhsa_kernarg_size 104
  .amdhsa_user_sgpr_count 2
  .amdhsa_user_sgpr_kernarg_segment_ptr 1
  .amdhsa_system_sgpr_workgroup_id_x 1
.end_amdhsa_kernel
"""
open(sys.argv[1], 'w').write(out)
print("lines", len(a.lines), "nops", a.nops)
```

```python
import sys, struct, math
from asmlib import *
NAME = "parallel_sum__gqa_block_cached__dense_activation_squared_relu__decode"
def f32(x): return struct.unpack('<I', struct.pack('<f', x))[0]
OPT = dict(nt='nt', wnt='nt', dbg=0, spin=0x10000, hold=1, slowsleep=16, dyn=30, sc='sc0_sc1', rot=1, early=0, hdelay=0, nofam=0, holdx=0, rotm=5, late=0, hearly=2, pp=0, ppsleep=10, qsleep=24, outsc=0, k3=0, mimic=1, lead3=1, pm=0, dbg2=0, light=1, lsleep=1, famdelay=24, famsleep=8)
for arg in sys.argv[2:]:
    k, v = arg.split('='); assert k in OPT, k; OPT[k] = v if not v.lstrip('-').isdigit() else int(v)
CSCALE = f32(math.log2(math.e)) if OPT['mimic'] else f32((128 ** -0.5) * math.log2(math.e))
NT = OPT['nt']; WNT = OPT['wnt']; DBG = OPT['dbg']; SPIN = OPT['spin']; SCB = OPT['sc'].replace('_', ' ')
L_Q = 0x0000
L_FLAG = 0x0200
L_YP = 0x0400
L_AO = 0x1400
L_AML = 0x2400
L_OB = 0x2500
L_XN = 0x2D00
LDS_BYTES = 0x5D00
W_O = 0; W_ML = 0x40000; W_CTR = 0x44000; W_Q = 0x48000; W_H = 0x68000; W_Y = 0x90000
a = Asm()
class VM:
    def __init__(s): s.q = []
    def issue(s, tag): s.q.append(tag)
    def wait(s, tag):
        idx = max(i for i, t in enumerate(s.q) if t == tag)
        n = len(s.q) - 1 - idx
        assert n <= 63
        a(f"s_waitcnt vmcnt({n})"); s.q = s.q[idx+1:]
def stamp(k):
    if DBG: a(f"s_memrealtime s[{72+2*k}:{73+2*k}]")
def vr(b, n=4): return f"v[{b}:{b+n-1}]"
S0, S1, P, XA, XB, O = 32, 36, 40, 48, 56, 64
Q = 16
KB = [96, 128]; VB = [160, 192]
SEL_LO, SEL_HI, SC = 's59', 's60', 's58'
WS = 's[52:55]'
CS = 's61'
def xswap16(v, t, op):
    a(f"v_mov_b32 v{t}, v{v}\nv_permlane16_swap_b32 v{v}, v{t}\n{op} v{v}, v{v}, v{t}")
def xswap32(v, t, op):
    a(f"v_mov_b32 v{t}, v{v}\nv_permlane32_swap_b32 v{v}, v{t}\n{op} v{v}, v{v}, v{t}")
def xreduce(v, t, op): xswap16(v, t, op); xswap32(v, t, op)
def rowreduce(v, op):
    for m in ("quad_perm:[1,0,3,2]", "quad_perm:[2,3,0,1]", "row_half_mirror", "row_mirror"):
        a(f"{op}_dpp v{v}, v{v}, v{v} {m} row_mask:0xf bank_mask:0xf")
def perm_mfma(base, fn):
    for i in range(4):
        X = XA if i % 2 == 0 else XB
        for jj in range(4):
            a(f"v_perm_b32 v{X+jj}, v{base+(2*jj+1)*4+i}, v{base+(2*jj)*4+i}, {SEL_LO}")
        for jj in range(4):
            a(f"v_perm_b32 v{X+4+jj}, v{base+(2*jj+1)*4+i}, v{base+(2*jj)*4+i}, {SEL_HI}")
        for hlf in range(2): fn(2*i+hlf, X+4*hlf)
def gemv_tile(base, A, first):
    perm_mfma(base, lambda e, X: a(f"v_mfma_f32_16x16x32_bf16 {vr(O+e*4)}, {vr(A)}, {vr(X)}, {'0' if first else vr(O+e*4)}"))
uid = [0]
def spin(name, body, okcond_branch, sleep=1):
    a(f"s_mov_b32 s12, {SPIN}")
    a.label(f"L_{name}_poll")
    body()
    a(f"{okcond_branch} L_{name}_ok")
    a(f"s_sleep {sleep}\ns_sub_u32 s12, s12, 1\ns_cmp_lg_u32 s12, 0\ns_cbranch_scc1 L_{name}_poll")
    a.label(f"L_{name}_ok")
def spin2(name, issue, nloads, check, post, sleep):
    a(f"s_mov_b32 s12, {SPIN}")
    issue(0)
    a(f"s_sleep {sleep}")
    a.label(f"L_{name}_poll")
    issue(1)
    a(f"s_waitcnt vmcnt({nloads})")
    check(0)
    a(f"s_cbranch_vccz L_{name}_ok0")
    issue(0)
    a(f"s_waitcnt vmcnt({nloads})")
    check(1)
    a(f"s_cbranch_vccz L_{name}_ok1")
    a(f"s_sub_u32 s12, s12, 1\ns_cmp_lg_u32 s12, 0\ns_cbranch_scc1 L_{name}_poll")
    a.label(f"L_{name}_ok1")
    post(1)
    a(f"s_branch L_{name}_done")
    a.label(f"L_{name}_ok0")
    post(0)
    a.label(f"L_{name}_done")
def anyinvalid(dst, regs):
    regs = list(regs)
    a(f"v_max3_u32 v{dst}, v{regs[0]}, v{regs[1]}, v{regs[2]}")
    rest = regs[3:]
    while len(rest) >= 2:
        a(f"v_max3_u32 v{dst}, v{dst}, v{rest[0]}, v{rest[1]}"); rest = rest[2:]
    if rest: a(f"v_max_u32 v{dst}, v{dst}, v{rest[0]}")
    a(f"v_cmp_eq_u32 vcc, -1, v{dst}")

a(f"""
s_cmp_ge_u32 s2, 256
s_cbranch_scc1 L_end
s_load_dwordx16 s[16:31], s[0:1], 0
s_load_dwordx8 s[32:39], s[0:1], 64
s_load_dwordx2 s[40:41], s[0:1], 96
v_lshrrev_b32 v1, 6, v0
v_and_b32 v0, 63, v0
v_readfirstlane_b32 s3, v1
s_lshr_b32 s7, s2, 3
s_and_b32 s6, s2, 7
s_and_b32 s4, s7, 15
s_lshr_b32 s5, s7, 4
v_and_b32 v2, 15, v0
v_lshrrev_b32 v3, 4, v0
{"s_memrealtime s[72:73]" if DBG else ""}
s_mov_b32 {SEL_LO}, 0x05040100
s_mov_b32 {SEL_HI}, 0x07060302
s_mov_b32 {SC}, {CSCALE:#x}
s_cmp_ge_u32 s3, 4
s_cbranch_scc1 L_aux
""")
a(f"""
v_lshlrev_b32 v4, 8, v2
v_lshl_add_u32 v4, v3, 4, v4
v_lshlrev_b32 v5, 10, v3
v_lshl_add_u32 v5, v2, 4, v5
s_lshl_b32 s8, s7, 23
s_lshl_b32 s9, s6, 20
s_lshl_b32 s66, s3, 13
s_add_u32 s66, s66, s9
s_mul_i32 s63, s7, {OPT['rotm']}
s_and_b32 s63, s63, 31
s_lshl_b32 s63, s63, 15
s_mov_b32 s67, s63
s_add_u32 s56, s66, s63
s_add_u32 s57, s56, 4096
s_mov_b32 s46, 0x800000
s_mov_b32 s47, 0x20000
s_mov_b32 s50, 0x800000
s_mov_b32 s51, 0x20000
s_mov_b32 s54, 0x40000000
s_mov_b32 s55, 0x20000
s_lshl_b32 s62, s7, 8
s_add_u32 s62, s62, {W_CTR}
v_mov_b32 v226, 0
s_mov_b32 s69, {f32(128 ** -0.5):#x}
s_waitcnt lgkmcnt(0)
s_mov_b32 s52, s40
s_mov_b32 s53, s41
s_add_u32 s44, s18, s8
s_addc_u32 s45, s19, 0
s_add_u32 s48, s20, s8
s_addc_u32 s49, s21, 0
s_barrier
s_barrier
""")
def issueKb(base, so=56):
    for j in range(8):
        t, jj = j >> 2, j & 3
        a(f"buffer_load_dwordx4 {vr(base+(t*4+jj)*4)}, v4, s[44:47], s{so+t} offen offset:{jj*64} {NT}")
def issueK(slot): issueKb(KB[slot])
def issueV(slot):
    for j in range(8):
        t, r = j >> 2, j & 3
        a(f"buffer_load_dwordx4 {vr(VB[slot]+(t*4+r)*4)}, v5, s[48:51], s{56+t} offen offset:{r*256} {NT}")
def advance():
    a("s_add_u32 s63, s63, 0x8000\ns_and_b32 s63, s63, 0xf8000\ns_add_u32 s56, s66, s63\ns_add_u32 s57, s56, 4096")
for slot in range(2):
    issueK(slot); issueV(slot); advance()
KX = 224
if OPT['k3']: issueKb(KX)
a("s_branch L_att_main")

def h_item(sid, srg, slc):
    a(f"""
s_cmp_ge_u32 {sid}, 72
s_cselect_b32 {srg}, 1, 0
s_cmp_ge_u32 {sid}, 144
s_cselect_b32 {srg}, 2, {srg}
s_cmp_ge_u32 {sid}, 216
s_cselect_b32 {srg}, 3, {srg}
s_mul_i32 {slc}, {srg}, 72
s_sub_u32 {slc}, {sid}, {slc}
""")
TV = 36
R_WO, R_W2, R_X = 224, 192, 128
def tile_voffs():
    a(f"v_mul_u32_u24 v{TV}, {8*1152}, v3\nv_lshl_add_u32 v{TV}, v2, 4, v{TV}")
    for j in range(1, 8): a(f"v_add_u32 v{TV+j}, {j*1152}, v{TV}")
def tile_soffs():
    a(f"""
s_lshl_b32 s10, s4, 8
s_lshl_b32 s11, s5, 7
s_add_u32 s10, s10, s11
s_lshl_b32 s11, s3, 5
s_add_u32 s10, s10, s11
s_mul_i32 s66, s10, 1152
s_lshl_b32 s11, {CS}, 7
s_add_u32 s66, s66, s11
s_mul_i32 s10, s4, 288
s_mul_i32 s14, s5, 144
s_add_u32 s10, s10, s14
s_lshl_b32 s14, s3, 5
s_add_u32 s63, s10, s14
s_mul_i32 s67, s63, 1152
s_add_u32 s67, s67, s11
s_mov_b32 s68, 0x00ff00ff
s_cmp_eq_u32 {CS}, 7
s_cselect_b32 s68, -1, s68
s_mov_b32 s69, s68
s_mov_b32 s94, {4096*1152}
s_mov_b32 s95, 0x20000
s_mov_b32 s98, {4608*1152}
s_mov_b32 s99, 0x20000
""")
def tile_ptrs():
    a("s_mov_b32 s92, s24\ns_mov_b32 s93, s25\ns_mov_b32 s96, s32\ns_mov_b32 s97, s33")
def tile_issue(vm, extra):
    a("s_mov_b64 exec, s[68:69]")
    for j in range(8):
        a(f"buffer_load_dwordx4 {vr(R_WO+j*4)}, v{TV+j}, s[92:95], s66 offen {WNT}"); vm.issue('wo')
    for j in range(8):
        a(f"buffer_load_dwordx4 {vr(R_W2+j*4)}, v{TV+j}, s[96:99], s67 offen {WNT}"); vm.issue('w2')
    if extra:
        a(f"s_mov_b64 exec, -1\nv_mov_b32 v44, 0x40000000\nv_cmp_gt_u32 vcc, 32, v0\ns_add_u32 s14, s67, {128*1152}\ns_mov_b64 exec, s[68:69]")
        for j in range(8):
            a(f"v_cndmask_b32 v45, v44, v{TV+j}, vcc\nbuffer_load_dwordx4 {vr(R_X+j*4)}, v45, s[96:99], s14 offen {WNT}"); vm.issue('wx')
    a("s_mov_b64 exec, -1")
a.label("L_aux")
a(f"""
s_sub_u32 s3, s3, 4
s_lshl_b32 s62, s5, 3
s_add_u32 s62, s62, s6
s_add_u32 {CS}, s6, {"s4" if OPT['rot'] else "0"}
s_and_b32 {CS}, {CS}, 7
s_lshl_b32 s64, {CS}, 5
s_add_u32 s64, s64, s7
s_add_u32 s65, s64, 224
""")
if OPT['early']: tile_voffs(); tile_soffs()
a("s_cmp_eq_u32 s3, 1\ns_cbranch_scc1 L_qunit\ns_setprio 2\ns_cmp_lg_u32 s3, 0\ns_cbranch_scc1 L_aux23")
a(f"""
v_mov_b32 v4, 0
v_mov_b32 v5, {L_FLAG}
ds_write_b32 v5, v4
v_mov_b32 v24, -1
v_mov_b32 v25, -1
v_mov_b32 v26, -1
v_mov_b32 v27, -1
""")
h_item('s64', 's10', 's11')
a(f"""
s_mul_i32 s10, s10, 36864
s_lshl_b32 s11, s11, 8
s_add_u32 s10, s10, s11
s_add_u32 s10, s10, {W_H}
""")
h_item('s65', 's11', 's13')
a(f"""
s_mul_i32 s11, s11, 36864
s_lshl_b32 s13, s13, 8
s_add_u32 s11, s11, s13
s_add_u32 s11, s11, {W_H}
s_and_b32 s8, s62, 3
s_lshl_b32 s8, s8, 8
s_lshr_b32 s9, s62, 2
s_lshl_b32 s9, s9, 10
s_add_u32 s8, s8, s9
s_lshl_b32 s9, s4, 13
s_add_u32 s8, s8, s9
s_add_u32 s8, s8, {W_Q}
v_and_b32 v6, 1, v3
v_lshlrev_b32 v7, 4, v2
v_lshl_add_u32 v8, v6, 12, v7
v_add_u32 v8, s8, v8
v_mul_u32_u24 v9, 18432, v6
v_add_u32 v9, v9, v7
v_add_u32 v10, s11, v9
v_add_u32 v9, s10, v9
v_cmp_gt_u32 vcc, 32, v0
v_cndmask_b32 v9, v9, v8, vcc
s_lshl_b32 s13, {CS}, 15
s_lshl_b32 s14, s4, 10
s_add_u32 s13, s13, s14
s_lshl_b32 s14, s5, 9
s_add_u32 s13, s13, s14
s_add_u32 s13, s13, {W_Y}
v_lshrrev_b32 v11, 5, v0
v_lshlrev_b32 v11, 14, v11
v_and_b32 v6, 31, v0
v_lshl_add_u32 v11, v6, 4, v11
s_lshl_b32 s8, s7, 13
s_lshl_b32 s9, s6, 10
s_add_u32 s8, s8, s9
v_lshlrev_b32 v12, 4, v0
s_lshl_b32 s9, s7, 7
s_lshl_b32 s14, s6, 3
s_add_u32 s9, s9, s14
s_add_u32 s9, s9, {W_ML}
v_lshlrev_b32 v13, 6, v0
s_mov_b32 s70, -1
s_cmp_eq_u32 {CS}, 7
s_cselect_b32 s70, 0, s70
s_mov_b32 s54, 0x40000000
s_mov_b32 s55, 0x20000
s_waitcnt lgkmcnt(0)
s_mov_b32 s52, s40
s_mov_b32 s53, s41
s_mov_b32 exec_hi, s70
buffer_store_dwordx4 v[24:27], v9, {WS}, 0 offen {SCB}
s_mov_b64 exec, -1
buffer_store_dwordx4 v[24:27], v12, {WS}, s8 offen {SCB}
buffer_store_dwordx4 v[24:27], v11, {WS}, s13 offen {SCB}
s_mov_b64 exec, 3
buffer_store_dwordx2 v[24:25], v13, {WS}, s9 offen {SCB}
s_cmp_lg_u32 s6, 0
s_cbranch_scc1 L_noctr
s_mov_b64 exec, 1
v_mov_b32 v28, 0
s_lshl_b32 s14, s7, 8
s_add_u32 s14, s14, {W_CTR}
buffer_store_dword v28, v28, {WS}, s14 offen {SCB}
L_noctr:
s_cmp_lt_u32 {CS}, 2
s_cbranch_scc0 L_noh2reset
s_mov_b32 exec_hi, 0
s_mov_b32 exec_lo, -1
buffer_store_dwordx4 v[24:27], v10, {WS}, 0 offen {SCB}
""")
a.label("L_noh2reset")
a("s_mov_b64 exec, -1")
if OPT['early']: tile_ptrs()
a("s_barrier")
vm = VM()
if OPT['early']:
    tile_issue(vm, True)
    nyoung = len(vm.q)
else: nyoung = 0
a(f"""
{"s_barrier" if OPT['holdx'] else ""}
s_mov_b64 exec, 1
s_lshl_b32 s11, s4, 4
v_mov_b32 v14, s11
v_mov_b32 v15, 1
s_waitcnt vmcnt({nyoung})
global_atomic_add v14, v15, s[38:39] sc1
ds_write_b32 v5, v15
{"s_barrier" if not OPT['holdx'] else ""}
""")
stamp(1)
def body():
    a("global_load_dword v16, v14, s[38:39] sc1\ns_waitcnt vmcnt(0)\nv_readfirstlane_b32 s8, v16\ns_cmp_ge_u32 s8, 16")
if OPT['famdelay']: a(f"s_sleep {OPT['famdelay']}")
if not OPT['nofam']: spin("fam", body, "s_cbranch_scc1", OPT['famsleep'])
stamp(2)
a(f"""
s_mov_b64 exec, -1
s_lshl_b32 s8, s4, 13
s_lshl_b32 s9, s5, 12
s_add_u32 s8, s8, s9
s_add_u32 s8, s8, {W_Q}
""")
QB = [16, 96]
def q_issue(k):
    for rg in range(4):
        a(f"buffer_load_dwordx4 {vr(QB[k]+4*rg)}, v12, {WS}, s8 offen offset:{rg*1024} {SCB}")
def q_post(k):
    b = QB[k]
    for c in range(4):
        a(f"v_add_f32 v{b+c}, v{b+c}, v{b+4+c}\nv_add_f32 v{b+8+c}, v{b+8+c}, v{b+12+c}\nv_add_f32 v{b+c}, v{b+c}, v{b+8+c}")
    a(f"""
v_cvt_pk_bf16_f32 v34, v{b}, v{b+1}
v_cvt_pk_bf16_f32 v35, v{b+2}, v{b+3}
v_lshlrev_b32 v33, 3, v0
ds_write_b64 v33, v[34:35] offset:{L_Q}
""")
if OPT['pp']:
    spin2("q", q_issue, 4, lambda k: anyinvalid(32, range(QB[k], QB[k]+16)), q_post, OPT['qsleep'])
else:
    def body():
        q_issue(0); a("s_waitcnt vmcnt(0)"); anyinvalid(32, range(16, 32))
    spin("q", body, "s_cbranch_vccz")
    q_post(0)
a("s_waitcnt lgkmcnt(0)")
stamp(3)
a("s_barrier\ns_branch L_aux2")

T0, T1, T2, T3, T4, T5, T6, T7 = 46, 47, 48, 49, 50, 51, 52, 53
def layernorm(vm):
    vm.wait('x')
    for k in range(10):
        a(f"v_lshlrev_b32 v{26+2*k}, 16, v{16+k}\nv_and_b32 v{27+2*k}, 0xffff0000, v{16+k}")
    a(f"v_add_f32 v{T0}, v26, v27\nv_add_f32 v{T1}, v28, v29")
    for k in range(4, 20, 2): a(f"v_add_f32 v{T0}, v{T0}, v{26+k}\nv_add_f32 v{T1}, v{T1}, v{27+k}")
    a(f"v_add_f32 v{T0}, v{T0}, v{T1}")
    rowreduce(T0, "v_add_f32"); xswap16(T0, T1, "v_add_f32")
    a(f"v_mul_f32 v{T0}, {f32(1.0/576):#x}, v{T0}")
    a(f"v_and_b32 v{T1}, 16, v0\nv_cmp_eq_u32 vcc, 0, v{T1}\nv_mov_b32 v{T2}, 0\nv_mov_b32 v{T4}, 0")
    for k in range(0, 20, 2):
        a(f"v_sub_f32 v{T3}, v{26+k}, v{T0}\nv_sub_f32 v{T5}, v{27+k}, v{T0}")
        if k >= 16: a(f"v_cndmask_b32 v{T3}, 0, v{T3}, vcc\nv_cndmask_b32 v{T5}, 0, v{T5}, vcc")
        a(f"v_fmac_f32 v{T2}, v{T3}, v{T3}\nv_fmac_f32 v{T4}, v{T5}, v{T5}")
    a(f"v_add_f32 v{T2}, v{T2}, v{T4}")
    rowreduce(T2, "v_add_f32"); xswap16(T2, T1, "v_add_f32")
    a(f"""
v_mul_f32 v{T2}, {f32(1.0/576):#x}, v{T2}
v_cvt_pk_bf16_f32 v{T1}, v{T0}, v{T2}
v_lshlrev_b32 v{T0}, 16, v{T1}
v_and_b32 v{T2}, 0xffff0000, v{T1}
v_add_f32 v{T2}, {f32(1e-5):#x}, v{T2}
v_cvt_pk_bf16_f32 v{T2}, v{T2}, v{T2}
v_lshlrev_b32 v{T2}, 16, v{T2}
v_sqrt_f32 v{T2}, v{T2}
v_cvt_pk_bf16_f32 v{T2}, v{T2}, v{T2}
v_lshlrev_b32 v{T2}, 16, v{T2}
v_rcp_f32 v{T2}, v{T2}
""")
    for k in range(10):
        t0, t1 = (T4, T5) if k % 2 == 0 else (T6, T7)
        a(f"v_sub_f32 v{t0}, v{26+2*k}, v{T0}\nv_sub_f32 v{t1}, v{27+2*k}, v{T0}")
        a(f"v_cvt_pk_bf16_f32 v{t0}, v{t0}, v{t1}")
        a(f"v_and_b32 v{t1}, 0xffff0000, v{t0}\nv_lshlrev_b32 v{t0}, 16, v{t0}")
        a(f"v_mul_f32 v{t0}, v{t0}, v{T2}\nv_mul_f32 v{t1}, v{t1}, v{T2}")
        a(f"v_cvt_pk_bf16_f32 v{16+k}, v{t0}, v{t1}")
    a(f"""
s_mul_i32 s13, s3, 3072
s_add_u32 s13, s13, {L_XN}
v_lshrrev_b32 v{T6}, 5, v0
v_mul_u32_u24 v{T6}, 1536, v{T6}
v_and_b32 v{T7}, 31, v0
v_lshl_add_u32 v{T6}, v{T7}, 3, v{T6}
v_add_u32 v{T6}, s13, v{T6}
""")
    for i in range(5): a(f"ds_write_b64 v{T6}, v[{16+2*i}:{17+2*i}] offset:{i*256}")
RING = [96, 128, 160]
def unit_addr(stride):
    a(f"""
v_lshrrev_b32 v6, 5, v0
v_mul_u32_u24 v6, 1152, v6
v_and_b32 v7, 31, v0
v_lshl_add_u32 v6, v7, 3, v6
v_add_u32 v7, 0x400, v6
v_and_b32 v8, 16, v0
v_cmp_eq_u32 vcc, 0, v8
v_mov_b32 v9, 0x40000000
v_cndmask_b32 v7, v9, v7, vcc
v_lshrrev_b32 v8, 3, v2
v_mul_u32_u24 v8, 72, v8
v_lshl_add_u32 v8, v3, 3, v8
v_mul_u32_u24 v8, {stride}, v8
v_and_b32 v10, 7, v2
v_lshl_add_u32 v8, v10, 4, v8
v_add_u32 v8, s8, v8
v_cmp_gt_u32 vcc, 16, v0
v_cndmask_b32 v5, v9, v8, vcc
""")
def unit_issue(vm, stride):
    for i in range(4):
        a(f"buffer_load_dwordx2 v[{16+2*i}:{17+2*i}], v6, s[44:47], 0 offen offset:{i*256}"); vm.issue('x')
    a("buffer_load_dwordx2 v[24:25], v7, s[44:47], 0 offen"); vm.issue('x')
    for j in range(1, 8): a(f"v_add_u32 v{8+j}, {stride}, v{8+j-1}")
    for st in range(3):
        if st == 2:
            a("v_mov_b32 v8, v5")
            for j in range(1, 8): a(f"v_add_u32 v{8+j}, {stride}, v{8+j-1}")
        a(f"s_mov_b32 s10, {st*32*stride}")
        for j in range(8):
            a(f"buffer_load_dwordx4 {vr(RING[st]+j*4)}, v{8+j}, s[48:51], s10 offen {WNT}"); vm.issue(('w', st))
def unit_compute(vm, srg, holdbar=False, st2=None):
    if holdbar and OPT['holdx'] == 2: a("s_barrier")
    if holdbar and OPT['holdx'] == 1:
        vm.wait('x'); vm.q.insert(0, 'x'); a("s_barrier")
    layernorm(vm)
    a(f"""
v_and_b32 v{T6}, 1, v2
v_mul_u32_u24 v{T6}, 1536, v{T6}
v_bfe_u32 v{T7}, v2, 1, 1
v_mul_u32_u24 v{T7}, 144, v{T7}
v_add_u32 v{T6}, v{T6}, v{T7}
v_lshl_add_u32 v{T6}, v3, 4, v{T6}
s_mul_i32 s9, {srg}, 288
s_add_u32 s9, s9, s13
v_add_u32 v{T6}, s9, v{T6}
s_waitcnt lgkmcnt(0)
""")
    for st in range(3): a(f"ds_read_b128 {vr(16+4*st)}, v{T6} offset:{st*64}")
    if st2 is not None: stamp(st2)
    a("s_waitcnt lgkmcnt(0)")
    for st in range(3):
        vm.wait(('w', st))
        if st == 2 and holdbar and OPT['holdx'] == 0: a("s_barrier")
        gemv_tile(RING[st], 16+4*st, st == 0)
    a("v_and_b32 v32, 8, v2\nv_cmp_ne_u32 vcc, 0, v32")
    for b in range(2):
        for e in range(8):
            a(f"v_cndmask_b32 v{16+b*8+e}, v{O+4*e+b}, v{O+4*e+2+b}, vcc")
    for k in range(16):
        a(f"v_add_f32_dpp v{16+k}, v{16+k}, v{16+k} row_ror:8 row_mask:0xf bank_mask:0xf")
    for k in range(16): a(f"v_min_u32 v{16+k}, -2, v{16+k}")
def unit_publish(bstride):
    a(f"""
s_add_u32 s9, s8, {bstride}
v_lshlrev_b32 v32, 5, v2
s_mov_b64 exec, 0xff
buffer_store_dwordx4 v[16:19], v32, {WS}, s8 offen {SCB}
buffer_store_dwordx4 v[20:23], v32, {WS}, s8 offen offset:16 {SCB}
buffer_store_dwordx4 v[24:27], v32, {WS}, s9 offen {SCB}
buffer_store_dwordx4 v[28:31], v32, {WS}, s9 offen offset:16 {SCB}
s_mov_b64 exec, -1
""")

a.label("L_qunit")
a(f"""
s_setprio 3
s_lshr_b32 s15, s62, 2
s_mul_i32 s9, s15, {144*8192}
s_lshl_b32 s8, s4, 9
s_add_u32 s8, s8, s9
s_and_b32 s9, s62, 3
s_lshl_b32 s9, s9, 7
s_add_u32 s8, s8, s9
""")
unit_addr(8192)
a(f"""
s_mov_b32 s46, 2304
s_mov_b32 s47, 0x20000
s_mov_b32 s50, {576*8192}
s_mov_b32 s51, 0x20000
s_mov_b32 s54, 0x40000000
s_mov_b32 s55, 0x20000
s_waitcnt lgkmcnt(0)
s_mov_b32 s44, s16
s_mov_b32 s45, s17
s_mov_b32 s48, s22
s_mov_b32 s49, s23
s_mov_b32 s52, s40
s_mov_b32 s53, s41
""")
if OPT['early']: tile_ptrs()
a("s_barrier")
vm = VM()
unit_issue(vm, 8192)
if OPT['early']: tile_issue(vm, False)
stamp(1)
unit_compute(vm, 's15', holdbar=True, st2=2)
def body():
    a(f"v_mov_b32 v33, {L_FLAG}\nds_read_b32 v34, v33\ns_waitcnt lgkmcnt(0)\nv_readfirstlane_b32 s8, v34\ns_cmp_eq_u32 s8, 1")
spin("rst1", body, "s_cbranch_scc1")
a(f"""
s_and_b32 s8, s62, 3
s_lshl_b32 s8, s8, 8
s_lshl_b32 s9, s15, 10
s_add_u32 s8, s8, s9
s_lshl_b32 s9, s4, 13
s_add_u32 s8, s8, s9
s_add_u32 s8, s8, {W_Q}
""")
unit_publish(4096)
stamp(3)
a("s_barrier\ns_branch L_aux2")

a.label("L_aux23")
a(f"""
s_mov_b32 s71, 0
s_cmp_eq_u32 s3, 2
s_cbranch_scc0 L_aux3sel
s_cmp_lt_u32 {CS}, 7
s_cselect_b32 s71, 1, 0
s_branch L_auxsel_done
""")
a.label("L_aux3sel")
a(f"s_mov_b32 s64, s65\ns_cmp_lt_u32 {CS}, 2\ns_cselect_b32 s71, 1, 0")
a.label("L_auxsel_done")
h_item('s64', 's15', 's70')
a(f"""
s_mul_i32 s8, s15, {144*9216}
s_lshl_b32 s9, s70, 7
s_add_u32 s8, s8, s9
""")
unit_addr(9216)
a(f"""
s_mov_b32 s46, 2304
s_mov_b32 s47, 0x20000
s_mov_b32 s50, {576*9216}
s_cmp_eq_u32 s71, 0
s_cselect_b32 s50, 0, s50
s_cselect_b32 s46, 0, s46
s_mov_b32 s51, 0x20000
s_mov_b32 s54, 0x40000000
s_mov_b32 s55, 0x20000
s_waitcnt lgkmcnt(0)
s_mov_b32 s44, s16
s_mov_b32 s45, s17
s_mov_b32 s48, s28
s_mov_b32 s49, s29
s_mov_b32 s52, s40
s_mov_b32 s53, s41
""")
if OPT['early']: tile_ptrs()
a("s_barrier")
vm23 = VM()
if OPT['hearly'] == 3:
    def body():
        a(f"v_mov_b32 v33, {L_FLAG}\nds_read_b32 v34, v33\ns_waitcnt lgkmcnt(0)\nv_readfirstlane_b32 s8, v34\ns_cmp_eq_u32 s8, 1")
    spin("rst23", body, "s_cbranch_scc1")
if OPT['hearly'] in (2, 3): unit_issue(vm23, 9216)
if OPT['early']: tile_issue(vm23, False)
a("s_barrier")
if OPT['hearly'] == 1: unit_issue(vm23, 9216)
a("s_barrier")
if OPT['hearly'] == 0:
    a("s_cmp_eq_u32 s71, 0\ns_cbranch_scc1 L_aux2")
    unit_issue(vm23, 9216)
a("s_cmp_eq_u32 s71, 0\ns_cbranch_scc1 L_aux2")
unit_compute(vm23, 's15')
a(f"""
s_mul_i32 s8, s15, 36864
s_lshl_b32 s9, s70, 8
s_add_u32 s8, s8, s9
s_add_u32 s8, s8, {W_H}
""")
unit_publish(18432)
a("s_branch L_aux2")

a.label("L_att_main")
stamp(1)
a("s_barrier")
stamp(2)
a(f"""
v_and_b32 v6, 1, v2
v_lshlrev_b32 v6, 8, v6
v_lshl_add_u32 v6, v3, 4, v6
""")
for jj in range(4): a(f"ds_read_b128 {vr(Q+jj*4)}, v6 offset:{L_Q+jj*64}")
for k in range(32): a(f"v_mov_b32 v{O+k}, 0")
a("v_mov_b32 v8, 0xff800000\nv_mov_b32 v9, 0\nv_mov_b32 v10, 0\ns_waitcnt lgkmcnt(0)")
def p_qk_mfma(K):
    for jj in range(4):
        for t in range(2):
            D = vr((S0, S1)[t])
            a(f"v_mfma_f32_16x16x32_bf16 {D}, {vr(K+(t*4+jj)*4)}, {vr(Q+jj*4)}, {'0' if jj == 0 else D}")
def p_soft():
    uid[0] += 1
    if OPT['mimic']:
        for jj in range(4): a(f"v_cvt_pk_bf16_f32 v{P+jj}, v{S0+2*jj}, v{S0+2*jj+1}")
        for jj in range(4): a(f"v_lshlrev_b32 v{S0+2*jj}, 16, v{P+jj}\nv_and_b32 v{S0+2*jj+1}, 0xffff0000, v{P+jj}")
        for e in range(8): a(f"v_mul_f32 v{S0+e}, s69, v{S0+e}")
        for jj in range(4): a(f"v_cvt_pk_bf16_f32 v{P+jj}, v{S0+2*jj}, v{S0+2*jj+1}")
        for jj in range(4): a(f"v_lshlrev_b32 v{S0+2*jj}, 16, v{P+jj}\nv_and_b32 v{S0+2*jj+1}, 0xffff0000, v{P+jj}")
    a(f"v_max3_f32 v11, v{S0}, v{S0+1}, v{S0+2}")
    a(f"v_max3_f32 v11, v11, v{S0+3}, v{S1}")
    a(f"v_max3_f32 v11, v11, v{S1+1}, v{S1+2}")
    a(f"v_max3_f32 v11, v11, v{S1+3}, v8")
    xreduce(11, 12, "v_max_f32")
    a(f"v_cmp_gt_f32 vcc, v11, v8")
    a(f"s_cbranch_vccz L_nors{uid[0]}")
    a(f"v_sub_f32 v12, v8, v11\nv_mul_f32 v12, {SC}, v12\nv_exp_f32 v12, v12\nv_mov_b32 v8, v11")
    a(f"v_mul_f32 v10, {SC}, v11\nv_sub_f32 v10, 0, v10")
    a("v_mul_f32 v9, v9, v12")
    for k in range(32): a(f"v_mul_f32 v{O+k}, v{O+k}, v12")
    a.label(f"L_nors{uid[0]}")
    for e in range(8): a(f"v_fma_f32 v{S0+e}, v{S0+e}, {SC}, v10")
    for e in range(8): a(f"v_exp_f32 v{S0+e}, v{S0+e}")
    for jj in range(4): a(f"v_cvt_pk_bf16_f32 v{P+jj}, v{S0+2*jj}, v{S0+2*jj+1}")
    a(f"v_add_f32 v12, v{S0}, v{S0+1}\nv_add_f32 v13, v{S0+2}, v{S0+3}\nv_add_f32 v14, v{S0+4}, v{S0+5}\nv_add_f32 v15, v{S0+6}, v{S0+7}")
    a("v_add_f32 v12, v12, v13\nv_add_f32 v14, v14, v15\nv_add_f32 v9, v9, v12\nv_add_f32 v9, v9, v14")
def p_pv(V):
    perm_mfma(V, lambda e, X: a(f"v_mfma_f32_16x16x32_bf16 {vr(O+e*4)}, {vr(X)}, {vr(P)}, {vr(O+e*4)}"))
def kslot(slot): return slot ^ 1 if OPT['k3'] else slot
def process(slot, prefetch, wK, wV, claim=False, dynoff=False, drain=None):
    K = KB[kslot(slot)]; V = VB[slot]
    a(f"s_waitcnt vmcnt({wK})")
    L3 = OPT['lead3']
    if dynoff and not L3: a(f"v_readfirstlane_b32 s8, v{224+slot}")
    p_qk_mfma(K)
    if dynoff and L3: a(f"s_waitcnt vmcnt(16)\nv_readfirstlane_b32 s8, v{224+(slot^1)}")
    if dynoff:
        NS = OPT['dyn']
        a(f"""
{"s_bfe_u32 s9, s8, 0x30002" if OPT['pm'] else "s_and_b32 s9, s8, 7"}
s_lshl_b32 s9, s9, 20
{"s_and_b32 s10, s8, 3" if OPT['pm'] else "s_bfe_u32 s10, s8, 0x20003"}
s_lshl_b32 s10, s10, 13
s_add_u32 s9, s9, s10
s_lshr_b32 s10, s8, 5
s_add_u32 s10, s10, {NS}
s_lshl_b32 s10, s10, 15
s_add_u32 s10, s10, s67
s_and_b32 s10, s10, 0xf8000
s_add_u32 s56, s9, s10
s_add_u32 s57, s56, 4096
s_cmp_lt_u32 s8, {32*(32-NS)}
s_cselect_b32 s{64+slot}, 1, 0
s_cbranch_scc0 {drain}
""")
    if claim:
        a(f"s_mov_b64 exec, 1\nv_mov_b32 v{224+slot}, 1\nbuffer_atomic_add v{224+slot}, v226, {WS}, s62 offen sc0 sc1\ns_mov_b64 exec, -1")
    LATE = OPT['late']
    if prefetch and not LATE: issueK(kslot(slot))
    p_soft()
    if LATE and prefetch: wV -= 8
    a(f"s_waitcnt vmcnt({wV})")
    p_pv(V)
    if prefetch:
        if LATE: issueK(kslot(slot))
        issueV(slot)
        if not dynoff: advance()
stamp(3)
NPEEL = 0
if OPT['k3']:
    assert OPT['dyn'] and not OPT['late']
    NPEEL = 4
    def koff_next():
        a("s_add_u32 s68, s63, 0x8000\ns_and_b32 s68, s68, 0xf8000\ns_add_u32 s70, s66, s68\ns_add_u32 s71, s70, 4096")
    a("s_waitcnt vmcnt(32)"); p_qk_mfma(KB[0]); koff_next(); issueKb(KB[0], 70); p_soft(); a("s_waitcnt vmcnt(32)"); p_pv(VB[0]); issueV(0); advance()
    a("s_waitcnt vmcnt(32)"); p_qk_mfma(KB[1]); koff_next(); issueKb(KB[1], 70); p_soft(); a("s_waitcnt vmcnt(32)"); p_pv(VB[1]); issueV(1); advance()
    a("s_waitcnt vmcnt(32)"); p_qk_mfma(KX); p_soft(); a("s_waitcnt vmcnt(16)"); p_pv(VB[0]); issueV(0); advance()
    a("s_waitcnt vmcnt(24)"); p_qk_mfma(KB[0]); issueK(0); p_soft(); a("s_waitcnt vmcnt(16)"); p_pv(VB[1]); issueV(1); advance()
    a("v_mov_b32 v226, 0")
if not OPT['dyn']:
    a("s_mov_b32 s61, 15")
    a.label("L_att_loop")
    process(0, True, 24, 24); process(1, True, 24, 24)
    a("s_sub_u32 s61, s61, 1\ns_cmp_lg_u32 s61, 0\ns_cbranch_scc1 L_att_loop")
    process(0, False, 24, 16); process(1, False, 8, 0)
else:
    NS = OPT['dyn']
    assert OPT['lead3'] or NS % 2 == 0
    nloop = ((NS - 4 - NPEEL) // 2)
    a(f"s_mov_b32 s61, {nloop}\ns_mov_b32 s64, 1\ns_mov_b32 s65, 1")
    a.label("L_att_loop")
    process(0, True, 24, 24); process(1, True, 24, 24)
    a("s_sub_u32 s61, s61, 1\ns_cmp_lg_u32 s61, 0\ns_cbranch_scc1 L_att_loop")
    n = NPEEL + 2*nloop
    if OPT['lead3']:
        while n < NS - 3:
            process(n % 2, True, 24, 24); n += 1
        process(n % 2, True, 24, 25, claim=True); n += 1
    else:
        process(0, True, 24, 25, claim=True)
        process(1, True, 25, 26, claim=True)
        n += 2
    f = n % 2
    a.label("L_dyn_loop")
    process(f, True, 25, 26, claim=True, dynoff=True, drain=f"L_drain{f}")
    process(f^1, True, 25, 26, claim=True, dynoff=True, drain=f"L_drain{f^1}")
    a("s_branch L_dyn_loop")
    for sl in range(2):
        a.label(f"L_drain{sl}")
        p_soft(); a(f"s_waitcnt vmcnt({16 if OPT['lead3'] else 17})"); p_pv(VB[sl])
        a(f"s_cmp_eq_u32 s{64+(sl^1)}, 0\ns_cbranch_scc1 L_dyn_done")
        a("s_waitcnt vmcnt(8)"); p_qk_mfma(KB[kslot(sl^1)]); p_soft(); a("s_waitcnt vmcnt(0)"); p_pv(VB[sl^1])
        if sl == 0: a("s_branch L_dyn_done")
    a.label("L_dyn_done")
stamp(4)
xreduce(9, 12, "v_add_f32")
a(f"""
s_lshl_b32 s8, s3, 10
v_and_b32 v6, 1, v2
v_lshlrev_b32 v6, 9, v6
v_lshl_add_u32 v6, v3, 7, v6
v_add_u32 v6, s8, v6
s_lshl_b32 s8, s3, 4
v_lshlrev_b32 v7, 3, v2
v_add_u32 v7, s8, v7
v_add_u32 v6, {L_AO}, v6
s_mov_b32 exec_lo, 0x00030003
s_mov_b32 exec_hi, 0x00030003
""")
for r in range(4):
    for e in range(0, 8, 2):
        a(f"ds_write2_b32 v6, v{O+4*e+r}, v{O+4*(e+1)+r} offset0:{r*8+e} offset1:{r*8+e+1}")
a(f"s_mov_b64 exec, 3\nds_write_b64 v7, v[8:9] offset:{L_AML}")
a("s_waitcnt lgkmcnt(0)\ns_barrier")
if DBG:
    stamp(5)
    a("s_cmp_lg_u32 s3, 0\ns_cbranch_scc1 L_end")
    a("s_waitcnt lgkmcnt(0) vmcnt(0)\ns_mov_b64 exec, 1")
    a(f"s_lshl_b32 s12, s2, 8\ns_add_u32 s12, s12, {0x200000}\nv_mov_b32 v4, 0")
    for k in range(6):
        a(f"v_mov_b32 v5, s{72+2*k}\nbuffer_store_dword v5, v4, {WS}, s12 offen offset:{k*4}")
a("s_endpgm")

a.label("L_aux2")
if not OPT['early']:
    vmx = VM()
    tile_soffs(); tile_ptrs()
    tile_voffs()
    a("s_cmp_eq_u32 s3, 0\ns_cbranch_scc0 L_lt1")
    tile_issue(vmx, True)
    a("s_branch L_lt2")
    a.label("L_lt1")
    tile_issue(VM(), False)
    a.label("L_lt2")
for _ in range(OPT['hdelay']): a("s_sleep 127")
a("s_waitcnt vmcnt(0)")
WX = 160
for i in range(4):
    for hlf, sel in enumerate((SEL_LO, SEL_HI)):
        for jj in range(4):
            a(f"v_perm_b32 v{WX + (2*i+hlf)*4 + jj}, v{R_WO+(2*jj+1)*4+i}, v{R_WO+(2*jj)*4+i}, {sel}")
a("v_lshlrev_b32 v4, 4, v2")
def body():
    a("global_load_dword v30, v4, s[38:39] sc1\ns_waitcnt vmcnt(0)\nv_cmp_gt_u32 vcc, 16, v30")
spin("all", body, "s_cbranch_vccz", OPT["slowsleep"])
a(f"""
v_lshrrev_b32 v4, 5, v0
v_mul_u32_u24 v4, 18432, v4
v_and_b32 v5, 31, v0
v_lshl_add_u32 v4, v5, 2, v4
s_lshl_b32 s8, s63, 2
s_add_u32 s8, s8, {W_H}
s_add_u32 s9, s8, 36864
s_add_u32 s10, s8, {2*36864}
s_add_u32 s11, s8, {3*36864}
s_mov_b32 s48, s30
s_mov_b32 s49, s31
s_mov_b32 s50, 9216
s_mov_b32 s51, 0x20000
v_lshlrev_b32 v6, 1, v5
s_lshl_b32 s13, s63, 1
buffer_load_ushort v24, v6, s[48:51], s13 offen
buffer_load_ushort v25, v6, s[48:51], s13 offen offset:256
v_add_u32 v7, 512, v4
v_cmp_gt_u32 vcc, 16, v5
v_mov_b32 v26, 0x40000000
v_cndmask_b32 v7, v26, v7, vcc
s_cmp_eq_u32 s3, 0
s_cselect_b32 s13, 0, 0x40000000
v_add_u32 v7, s13, v7
""")
def body():
    for rg, so in enumerate(('s8', 's9', 's10', 's11')):
        a(f"buffer_load_dword v{16+rg}, v4, {WS}, {so} offen {SCB}")
    for rg, so in enumerate(('s8', 's9', 's10', 's11')):
        a(f"buffer_load_dword v{20+rg}, v7, {WS}, {so} offen {SCB}")
    a("s_waitcnt vmcnt(0)")
    anyinvalid(26, range(16, 24))
spin("h", body, "s_cbranch_vccz", OPT["slowsleep"])
def h_finish(p, b1, dst):
    a(f"""
v_add_f32 v{p}, v{p}, v{p+1}
v_add_f32 v{p+2}, v{p+2}, v{p+3}
v_add_f32 v{p}, v{p}, v{p+2}
v_lshlrev_b32 v{b1}, 16, v{b1}
v_cvt_pk_bf16_f32 v{p}, v{p}, v{p}
v_lshlrev_b32 v{p}, 16, v{p}
v_add_f32 v{p}, v{p}, v{b1}
v_cvt_pk_bf16_f32 v{p}, v{p}, v{p}
v_lshlrev_b32 v{p}, 16, v{p}
v_max_f32 v{p}, 0, v{p}
v_mul_f32 v{p}, v{p}, v{p}
v_cvt_pk_bf16_f32 v{dst}, v{p}, v{p}
""")
h_finish(16, 24, 26); h_finish(20, 25, 27)
a(f"""
s_lshl_b32 s13, s3, 9
s_add_u32 s13, s13, {L_OB}
v_lshl_add_u32 v6, v0, 1, s13
ds_write_b16 v6, v26
ds_write_b16 v6, v27 offset:128
v_and_b32 v7, 1, v2
v_lshlrev_b32 v7, 6, v7
v_lshl_add_u32 v7, v3, 4, v7
v_add_u32 v7, s13, v7
s_waitcnt lgkmcnt(0)
ds_read_b128 v[16:19], v7
ds_read_b128 v[20:23], v7 offset:128
s_waitcnt lgkmcnt(0)
""")
gemv_tile(R_W2, 16, True)
a("s_cmp_eq_u32 s3, 0\ns_cbranch_scc0 L_no_x2")
gemv_tile(R_X, 20, False)
a.label("L_no_x2")
stamp(4)
a(f"s_cmp_lg_u32 s3, 1\ns_cbranch_scc1 L_nobase\ns_lshl_b32 s8, {CS}, 1\ns_cmp_lg_u32 s8, s4\ns_cbranch_scc1 L_nobase")
a(f"""
s_mov_b32 s48, s34
s_mov_b32 s49, s35
s_mov_b32 s50, 1152
s_mov_b32 s51, 0x20000
s_lshl_b32 s8, {CS}, 7
v_and_b32 v5, 31, v0
v_lshlrev_b32 v5, 3, v5
buffer_load_dwordx2 v[24:25], v5, s[48:51], s8 offen
s_mul_i32 s9, s5, 1152
s_add_u32 s8, s8, s9
s_mov_b32 s44, s16
s_mov_b32 s45, s17
s_mov_b32 s46, 2304
s_mov_b32 s47, 0x20000
buffer_load_dwordx2 v[26:27], v5, s[44:47], s8 offen
s_waitcnt vmcnt(0)
""")
for k in range(2):
    a(f"""
v_lshlrev_b32 v{28+2*k}, 16, v{24+k}
v_and_b32 v{29+2*k}, 0xffff0000, v{24+k}
v_lshlrev_b32 v46, 16, v{26+k}
v_and_b32 v47, 0xffff0000, v{26+k}
v_add_f32 v{28+2*k}, v{28+2*k}, v46
v_add_f32 v{29+2*k}, v{29+2*k}, v47
""")
a.label("L_nobase")
stamp(5)
a(f"""
v_lshrrev_b32 v4, 5, v0
v_lshlrev_b32 v5, 11, v4
v_lshlrev_b32 v4, 17, v4
v_and_b32 v6, 31, v0
v_lshl_add_u32 v4, v6, 2, v4
s_lshl_b32 s8, s4, 13
s_lshl_b32 s9, s5, 9
s_add_u32 s8, s8, s9
s_lshl_b32 s9, s3, 7
s_add_u32 s8, s8, s9
s_add_u32 s9, s8, 4096
s_lshl_b32 s10, s4, 7
s_lshl_b32 s11, s5, 6
s_add_u32 s10, s10, s11
s_add_u32 s10, s10, {W_ML}
s_barrier
""")
stamp(6)
a("s_cmp_lg_u32 s3, 0\ns_cbranch_scc1 L_l1")
a(f"""
v_lshlrev_b32 v6, 4, v0
v_lshrrev_b32 v7, 5, v0
v_lshlrev_b32 v7, 3, v7
""")
for w in range(4):
    a(f"ds_read_b128 {vr(96+4*w)}, v6 offset:{L_AO + w*1024}")
    a(f"ds_read_b64 v[{112+2*w}:{113+2*w}], v7 offset:{L_AML + w*16}")
a(f"""
s_lshl_b32 s12, s7, 13
s_lshl_b32 s13, s6, 10
s_add_u32 s12, s12, s13
s_lshl_b32 s13, s7, 7
s_lshl_b32 s14, s6, 3
s_add_u32 s13, s13, s14
s_add_u32 s13, s13, {W_ML}
v_lshlrev_b32 v7, 1, v0
s_waitcnt lgkmcnt(0)
v_max3_f32 v120, v112, v114, v116
v_max_f32 v120, v120, v118
""")
for w in range(4): a(f"v_sub_f32 v{122+w}, v{112+2*w}, v120")
for w in range(4): a(f"v_mul_f32 v{122+w}, {SC}, v{122+w}")
for w in range(4): a(f"v_exp_f32 v{122+w}, v{122+w}")
a("v_mul_f32 v121, v122, v113")
for k in range(4): a(f"v_mul_f32 v{128+k}, v122, v{96+k}")
for w in range(1, 4):
    a(f"v_fmac_f32 v121, v{122+w}, v{113+2*w}")
    for k in range(4): a(f"v_fmac_f32 v{128+k}, v{122+w}, v{96+4*w+k}")
for k in range(4): a(f"v_min_u32 v{128+k}, -2, v{128+k}")
a(f"""
v_min_u32 v120, -2, v120
v_min_u32 v121, -2, v121
buffer_store_dwordx4 v[128:131], v6, {WS}, s12 offen {SCB}
s_mov_b32 exec_lo, 1
s_mov_b32 exec_hi, 1
buffer_store_dwordx2 v[120:121], v7, {WS}, s13 offen {SCB}
s_mov_b64 exec, -1
""")
if OPT['dbg2']:
    stamp(1); a("s_waitcnt vmcnt(1)"); stamp(4); a("s_waitcnt vmcnt(0)"); stamp(2)
if OPT['light']:
    a(f"""
v_lshrrev_b32 v132, 2, v0
v_lshlrev_b32 v132, 11, v132
v_and_b32 v133, 3, v0
v_lshl_add_u32 v132, v133, 4, v132
v_cmp_gt_u32 vcc, 8, v0
v_mov_b32 v133, 0x40000000
v_cndmask_b32 v132, v133, v132, vcc
""")
    def body():
        a(f"buffer_load_dwordx4 v[136:139], v132, {WS}, s10 offen {SCB}\ns_waitcnt vmcnt(0)")
        anyinvalid(133, range(136, 140))
    spin("lp", body, "s_cbranch_vccz", OPT['lsleep'])
a.label("L_l1")
if OPT['light']: a("s_barrier")
LB = [96, 192]
def l1_issue(k):
    b = LB[k]
    for s_ in range(8):
        a(f"buffer_load_dword v{b+s_}, v4, {WS}, {'s8' if s_ < 4 else 's9'} offen offset:{(s_%4)*1024} {SCB}")
    for kk in range(4):
        a(f"buffer_load_dwordx4 {vr(b+8+4*kk)}, v5, {WS}, s10 offen offset:{kk*16} {SCB}")
def l1_post(k):
    b = LB[k]; m = b + 8
    stamp(7)
    a(f"v_max3_f32 v120, v{m}, v{m+2}, v{m+4}\nv_max3_f32 v120, v120, v{m+6}, v{m+8}\nv_max3_f32 v120, v120, v{m+10}, v{m+12}\nv_max_f32 v120, v120, v{m+14}")
    for s_ in range(8): a(f"v_sub_f32 v{122+s_}, v{m+2*s_}, v120")
    for s_ in range(8): a(f"v_mul_f32 v{122+s_}, {SC}, v{122+s_}")
    for s_ in range(8): a(f"v_exp_f32 v{122+s_}, v{122+s_}")
    a(f"v_mul_f32 v121, v122, v{m+1}\nv_mul_f32 v130, v122, v{b}")
    for s_ in range(1, 8):
        a(f"v_fmac_f32 v121, v{122+s_}, v{m+1+2*s_}\nv_fmac_f32 v130, v{122+s_}, v{b+s_}")
a(f"""
s_lshl_b32 s13, s3, 9
s_add_u32 s13, s13, {L_OB}
v_lshl_add_u32 v6, v0, 1, s13
v_and_b32 v7, 1, v2
v_lshlrev_b32 v7, 6, v7
v_lshl_add_u32 v7, v3, 4, v7
v_add_u32 v7, s13, v7
""")
if OPT['pp']:
    spin2("l1", l1_issue, 12, lambda k: anyinvalid(120, range(LB[k], LB[k]+24)), l1_post, OPT['ppsleep'])
else:
    def body():
        if OPT['dbg2']: stamp(3)
        l1_issue(0); a("s_waitcnt vmcnt(0)"); anyinvalid(120, range(96, 120))
    spin("l1", body, "s_cbranch_vccz")
    l1_post(0)
a(f"""
v_rcp_f32 v121, v121
v_mul_f32 v130, v130, v121
v_cvt_pk_bf16_f32 v130, v130, v130
ds_write_b16 v6, v130
s_waitcnt lgkmcnt(0)
ds_read_b128 v[132:135], v7
s_waitcnt lgkmcnt(0)
""")
for e in range(8):
    D = vr(O+4*e)
    a(f"v_mfma_f32_16x16x32_bf16 {D}, {vr(132)}, {vr(WX+e*4)}, {D}")
a(f"s_lshl_b32 s12, s3, 10\ns_add_u32 s12, s12, {L_YP}\nv_lshl_add_u32 v6, v2, 5, s12\ns_mov_b64 exec, 0xffff")
for b in range(2):
    for e in range(0, 8, 2):
        a(f"ds_write2_b32 v6, v{O+4*e+b}, v{O+4*(e+1)+b} offset0:{b*128+e} offset1:{b*128+e+1}")
a("s_mov_b64 exec, -1\ns_waitcnt lgkmcnt(0)\ns_barrier")
stamp(8)
a("s_cmp_eq_u32 s3, 1\ns_cbranch_scc1 L_final\ns_cmp_lg_u32 s3, 0\ns_cbranch_scc1 L_endaux")
a("v_lshlrev_b32 v6, 4, v0")
for w in range(4): a(f"ds_read_b128 {vr(136+4*w)}, v6 offset:{L_YP + w*1024}")
a(f"""
s_lshl_b32 s13, {CS}, 15
s_lshl_b32 s14, s4, 10
s_add_u32 s13, s13, s14
s_lshl_b32 s14, s5, 9
s_add_u32 s13, s13, s14
s_add_u32 s13, s13, {W_Y}
v_lshrrev_b32 v11, 5, v0
v_lshlrev_b32 v11, 14, v11
v_and_b32 v7, 31, v0
v_lshl_add_u32 v11, v7, 4, v11
s_mov_b32 s14, 0x0000ffff
s_cmp_eq_u32 {CS}, 7
s_cselect_b32 s14, -1, s14
s_waitcnt lgkmcnt(0)
""")
for k in range(4):
    a(f"v_add_f32 v{136+k}, v{136+k}, v{140+k}\nv_add_f32 v{144+k}, v{144+k}, v{148+k}")
for k in range(4):
    a(f"v_add_f32 v{136+k}, v{136+k}, v{144+k}")
for k in range(4): a(f"v_min_u32 v{136+k}, -2, v{136+k}")
a(f"""
s_mov_b32 exec_lo, s14
s_mov_b32 exec_hi, s14
buffer_store_dwordx4 v[136:139], v11, {WS}, s13 offen {SCB}
s_branch L_endaux
""")
a.label("L_final")
a(f"""
s_lshl_b32 s8, {CS}, 1
s_cmp_lg_u32 s8, s4
s_cbranch_scc1 L_endaux
s_lshl_b32 s8, {CS}, 15
s_lshl_b32 s9, s5, 14
s_add_u32 s8, s8, s9
s_add_u32 s8, s8, {W_Y}
s_add_u32 s9, s8, 4096
v_lshrrev_b32 v4, 5, v0
v_lshlrev_b32 v4, 13, v4
v_and_b32 v5, 31, v0
v_lshl_add_u32 v4, v5, 4, v4
s_mov_b32 s14, 0x0000ffff
s_cmp_eq_u32 {CS}, 7
s_cselect_b32 s14, -1, s14
s_mov_b32 exec_lo, s14
s_mov_b32 exec_hi, s14
""")
FB = [96, 192]
def f_issue(k):
    for kk in range(16):
        a(f"buffer_load_dwordx4 {vr(FB[k]+4*kk)}, v4, {WS}, {'s8' if kk < 8 else 's9'} offen offset:{(kk%8)*512} {SCB}")
def f_post(k):
    b = FB[k]
    for st in (1, 2, 4):
        for kk in range(0, 16, 2*st):
            for c in range(4):
                a(f"v_add_f32 v{b+4*kk+c}, v{b+4*kk+c}, v{b+4*(kk+st)+c}")
    for c in range(4): a(f"v_add_f32 v{164+c}, v{b+c}, v{b+32+c}")
if OPT['pp']:
    spin2("fin", f_issue, 16, lambda k: anyinvalid(160, range(FB[k], FB[k]+64)), f_post, OPT['ppsleep'])
else:
    def body():
        f_issue(0); a("s_waitcnt vmcnt(0)"); anyinvalid(160, range(96, 160))
    spin("fin", body, "s_cbranch_vccz")
    f_post(0)
a("s_mov_b64 exec, -1")
for c in range(4): xswap32(164+c, 160+c, "v_add_f32")
for c in range(4): a(f"v_add_f32 v{164+c}, v{164+c}, v{28+c}")
a(f"""
v_cvt_pk_bf16_f32 v168, v164, v165
v_cvt_pk_bf16_f32 v169, v166, v167
s_mov_b32 s48, s36
s_mov_b32 s49, s37
s_mov_b32 s50, 2304
s_mov_b32 s51, 0x20000
s_lshl_b32 s8, {CS}, 7
s_mul_i32 s9, s5, 1152
s_add_u32 s8, s8, s9
v_lshlrev_b32 v5, 3, v5
s_mov_b32 exec_lo, s14
s_mov_b32 exec_hi, 0
buffer_store_dwordx2 v[168:169], v5, s[48:51], s8 offen {'sc0 sc1' if OPT['outsc'] else ''}
""")
a.label("L_endaux")
if DBG:
    stamp(9)
    a("s_waitcnt lgkmcnt(0) vmcnt(0)\ns_mov_b64 exec, 1")
    a(f"s_lshl_b32 s12, s2, 9\ns_lshl_b32 s13, s3, 6\ns_add_u32 s12, s12, s13\ns_add_u32 s12, s12, {0x280000}\nv_mov_b32 v4, 0")
    for k in range(10):
        a(f"v_mov_b32 v5, s{72+2*k}\nbuffer_store_dword v5, v4, {WS}, s12 offen offset:{k*4}")
a.label("L_end")
a("s_endpgm")

DOC = '''; Design (one launch, 256 workgroups x 8 waves, one workgroup per CU; workgroup = (batch b, kv head, key split s)):
'''
ref = open('cdna_kernels/' + NAME + '.s.ref').read().split('\n')
hdr = [l for l in ref if l.startswith(';') and '@launch' not in l]
out = "\n".join(hdr) + f"\n; @launch grid=(256,1,1) block=(512,1,1) lds={LDS_BYTES}\n" + DOC
out += f""".amdgcn_target "amdgcn-amd-amdhsa--gfx950"
.text
.globl {NAME}_kernel
.p2align 8
.type {NAME}_kernel,@function
{NAME}_kernel:
""" + a.text() + f""".section .rodata,"a"
.p2align 6
.amdhsa_kernel {NAME}_kernel
  .amdhsa_next_free_vgpr 256
  .amdhsa_next_free_sgpr 102
  .amdhsa_accum_offset 256
  .amdhsa_group_segment_fixed_size 0
  .amdhsa_kernarg_size 104
  .amdhsa_user_sgpr_count 2
  .amdhsa_user_sgpr_kernarg_segment_ptr 1
  .amdhsa_system_sgpr_workgroup_id_x 1
.end_amdhsa_kernel
"""
open(sys.argv[1], 'w').write(out)
print("lines", len(a.lines), "nops", a.nops)
```

```python
import sys, struct, math
from asmlib import *
NAME = "parallel_sum__gqa_block_cached__dense_activation_squared_relu__decode"
def f32(x): return struct.unpack('<I', struct.pack('<f', x))[0]
OPT = dict(nt='nt', wnt='nt', dbg=0, spin=0x10000, hold=1, slowsleep=16, dyn=30, sc='sc0_sc1', rot=1, early=0, hdelay=0, nofam=0, holdx=0, rotm=5, late=0, hearly=2, pp=0, ppsleep=10, qsleep=24, outsc=0, k3=0, mimic=1, lead3=1, pm=0, dbg2=0, light=1, lsleep=1, famdelay=24, famsleep=8, all0=1)
for arg in sys.argv[2:]:
    k, v = arg.split('='); assert k in OPT, k; OPT[k] = v if not v.lstrip('-').isdigit() else int(v)
CSCALE = f32(math.log2(math.e)) if OPT['mimic'] else f32((128 ** -0.5) * math.log2(math.e))
NT = OPT['nt']; WNT = OPT['wnt']; DBG = OPT['dbg']; SPIN = OPT['spin']; SCB = OPT['sc'].replace('_', ' ')
L_Q = 0x0000
L_FLAG = 0x0200
L_YP = 0x0400
L_AO = 0x1400
L_AML = 0x2400
L_OB = 0x2500
L_XN = 0x2D00
LDS_BYTES = 0x5D00
W_O = 0; W_ML = 0x40000; W_CTR = 0x44000; W_Q = 0x48000; W_H = 0x68000; W_Y = 0x90000
a = Asm()
class VM:
    def __init__(s): s.q = []
    def issue(s, tag): s.q.append(tag)
    def wait(s, tag):
        idx = max(i for i, t in enumerate(s.q) if t == tag)
        n = len(s.q) - 1 - idx
        assert n <= 63
        a(f"s_waitcnt vmcnt({n})"); s.q = s.q[idx+1:]
def stamp(k):
    if DBG: a(f"s_memrealtime s[{72+2*k}:{73+2*k}]")
def vr(b, n=4): return f"v[{b}:{b+n-1}]"
S0, S1, P, XA, XB, O = 32, 36, 40, 48, 56, 64
Q = 16
KB = [96, 128]; VB = [160, 192]
SEL_LO, SEL_HI, SC = 's59', 's60', 's58'
WS = 's[52:55]'
CS = 's61'
def xswap16(v, t, op):
    a(f"v_mov_b32 v{t}, v{v}\nv_permlane16_swap_b32 v{v}, v{t}\n{op} v{v}, v{v}, v{t}")
def xswap32(v, t, op):
    a(f"v_mov_b32 v{t}, v{v}\nv_permlane32_swap_b32 v{v}, v{t}\n{op} v{v}, v{v}, v{t}")
def xreduce(v, t, op): xswap16(v, t, op); xswap32(v, t, op)
def rowreduce(v, op):
    for m in ("quad_perm:[1,0,3,2]", "quad_perm:[2,3,0,1]", "row_half_mirror", "row_mirror"):
        a(f"{op}_dpp v{v}, v{v}, v{v} {m} row_mask:0xf bank_mask:0xf")
def perm_mfma(base, fn):
    for i in range(4):
        X = XA if i % 2 == 0 else XB
        for jj in range(4):
            a(f"v_perm_b32 v{X+jj}, v{base+(2*jj+1)*4+i}, v{base+(2*jj)*4+i}, {SEL_LO}")
        for jj in range(4):
            a(f"v_perm_b32 v{X+4+jj}, v{base+(2*jj+1)*4+i}, v{base+(2*jj)*4+i}, {SEL_HI}")
        for hlf in range(2): fn(2*i+hlf, X+4*hlf)
def gemv_tile(base, A, first):
    perm_mfma(base, lambda e, X: a(f"v_mfma_f32_16x16x32_bf16 {vr(O+e*4)}, {vr(A)}, {vr(X)}, {'0' if first else vr(O+e*4)}"))
uid = [0]
def spin(name, body, okcond_branch, sleep=1):
    a(f"s_mov_b32 s12, {SPIN}")
    a.label(f"L_{name}_poll")
    body()
    a(f"{okcond_branch} L_{name}_ok")
    a(f"s_sleep {sleep}\ns_sub_u32 s12, s12, 1\ns_cmp_lg_u32 s12, 0\ns_cbranch_scc1 L_{name}_poll")
    a.label(f"L_{name}_ok")
def spin2(name, issue, nloads, check, post, sleep):
    a(f"s_mov_b32 s12, {SPIN}")
    issue(0)
    a(f"s_sleep {sleep}")
    a.label(f"L_{name}_poll")
    issue(1)
    a(f"s_waitcnt vmcnt({nloads})")
    check(0)
    a(f"s_cbranch_vccz L_{name}_ok0")
    issue(0)
    a(f"s_waitcnt vmcnt({nloads})")
    check(1)
    a(f"s_cbranch_vccz L_{name}_ok1")
    a(f"s_sub_u32 s12, s12, 1\ns_cmp_lg_u32 s12, 0\ns_cbranch_scc1 L_{name}_poll")
    a.label(f"L_{name}_ok1")
    post(1)
    a(f"s_branch L_{name}_done")
    a.label(f"L_{name}_ok0")
    post(0)
    a.label(f"L_{name}_done")
def anyinvalid(dst, regs):
    regs = list(regs)
    a(f"v_max3_u32 v{dst}, v{regs[0]}, v{regs[1]}, v{regs[2]}")
    rest = regs[3:]
    while len(rest) >= 2:
        a(f"v_max3_u32 v{dst}, v{dst}, v{rest[0]}, v{rest[1]}"); rest = rest[2:]
    if rest: a(f"v_max_u32 v{dst}, v{dst}, v{rest[0]}")
    a(f"v_cmp_eq_u32 vcc, -1, v{dst}")

a(f"""
s_cmp_ge_u32 s2, 256
s_cbranch_scc1 L_end
s_load_dwordx16 s[16:31], s[0:1], 0
s_load_dwordx8 s[32:39], s[0:1], 64
s_load_dwordx2 s[40:41], s[0:1], 96
v_lshrrev_b32 v1, 6, v0
v_and_b32 v0, 63, v0
v_readfirstlane_b32 s3, v1
s_lshr_b32 s7, s2, 3
s_and_b32 s6, s2, 7
s_and_b32 s4, s7, 15
s_lshr_b32 s5, s7, 4
v_and_b32 v2, 15, v0
v_lshrrev_b32 v3, 4, v0
{"s_memrealtime s[72:73]" if DBG else ""}
s_mov_b32 {SEL_LO}, 0x05040100
s_mov_b32 {SEL_HI}, 0x07060302
s_mov_b32 {SC}, {CSCALE:#x}
s_cmp_ge_u32 s3, 4
s_cbranch_scc1 L_aux
""")
a(f"""
v_lshlrev_b32 v4, 8, v2
v_lshl_add_u32 v4, v3, 4, v4
v_lshlrev_b32 v5, 10, v3
v_lshl_add_u32 v5, v2, 4, v5
s_lshl_b32 s8, s7, 23
s_lshl_b32 s9, s6, 20
s_lshl_b32 s66, s3, 13
s_add_u32 s66, s66, s9
s_mul_i32 s63, s7, {OPT['rotm']}
s_and_b32 s63, s63, 31
s_lshl_b32 s63, s63, 15
s_mov_b32 s67, s63
s_add_u32 s56, s66, s63
s_add_u32 s57, s56, 4096
s_mov_b32 s46, 0x800000
s_mov_b32 s47, 0x20000
s_mov_b32 s50, 0x800000
s_mov_b32 s51, 0x20000
s_mov_b32 s54, 0x40000000
s_mov_b32 s55, 0x20000
s_lshl_b32 s62, s7, 8
s_add_u32 s62, s62, {W_CTR}
v_mov_b32 v226, 0
s_mov_b32 s69, {f32(128 ** -0.5):#x}
s_waitcnt lgkmcnt(0)
s_mov_b32 s52, s40
s_mov_b32 s53, s41
s_add_u32 s44, s18, s8
s_addc_u32 s45, s19, 0
s_add_u32 s48, s20, s8
s_addc_u32 s49, s21, 0
s_barrier
s_barrier
""")
def issueKb(base, so=56):
    for j in range(8):
        t, jj = j >> 2, j & 3
        a(f"buffer_load_dwordx4 {vr(base+(t*4+jj)*4)}, v4, s[44:47], s{so+t} offen offset:{jj*64} {NT}")
def issueK(slot): issueKb(KB[slot])
def issueV(slot):
    for j in range(8):
        t, r = j >> 2, j & 3
        a(f"buffer_load_dwordx4 {vr(VB[slot]+(t*4+r)*4)}, v5, s[48:51], s{56+t} offen offset:{r*256} {NT}")
def advance():
    a("s_add_u32 s63, s63, 0x8000\ns_and_b32 s63, s63, 0xf8000\ns_add_u32 s56, s66, s63\ns_add_u32 s57, s56, 4096")
for slot in range(2):
    issueK(slot); issueV(slot); advance()
KX = 224
if OPT['k3']: issueKb(KX)
a("s_branch L_att_main")

def h_item(sid, srg, slc):
    a(f"""
s_cmp_ge_u32 {sid}, 72
s_cselect_b32 {srg}, 1, 0
s_cmp_ge_u32 {sid}, 144
s_cselect_b32 {srg}, 2, {srg}
s_cmp_ge_u32 {sid}, 216
s_cselect_b32 {srg}, 3, {srg}
s_mul_i32 {slc}, {srg}, 72
s_sub_u32 {slc}, {sid}, {slc}
""")
TV = 36
R_WO, R_W2, R_X = 224, 192, 128
def tile_voffs():
    a(f"v_mul_u32_u24 v{TV}, {8*1152}, v3\nv_lshl_add_u32 v{TV}, v2, 4, v{TV}")
    for j in range(1, 8): a(f"v_add_u32 v{TV+j}, {j*1152}, v{TV}")
def tile_soffs():
    a(f"""
s_lshl_b32 s10, s4, 8
s_lshl_b32 s11, s5, 7
s_add_u32 s10, s10, s11
s_lshl_b32 s11, s3, 5
s_add_u32 s10, s10, s11
s_mul_i32 s66, s10, 1152
s_lshl_b32 s11, {CS}, 7
s_add_u32 s66, s66, s11
s_mul_i32 s10, s4, 288
s_mul_i32 s14, s5, 144
s_add_u32 s10, s10, s14
s_lshl_b32 s14, s3, 5
s_add_u32 s63, s10, s14
s_mul_i32 s67, s63, 1152
s_add_u32 s67, s67, s11
s_mov_b32 s68, 0x00ff00ff
s_cmp_eq_u32 {CS}, 7
s_cselect_b32 s68, -1, s68
s_mov_b32 s69, s68
s_mov_b32 s94, {4096*1152}
s_mov_b32 s95, 0x20000
s_mov_b32 s98, {4608*1152}
s_mov_b32 s99, 0x20000
""")
def tile_ptrs():
    a("s_mov_b32 s92, s24\ns_mov_b32 s93, s25\ns_mov_b32 s96, s32\ns_mov_b32 s97, s33")
def tile_issue(vm, extra):
    a("s_mov_b64 exec, s[68:69]")
    for j in range(8):
        a(f"buffer_load_dwordx4 {vr(R_WO+j*4)}, v{TV+j}, s[92:95], s66 offen {WNT}"); vm.issue('wo')
    for j in range(8):
        a(f"buffer_load_dwordx4 {vr(R_W2+j*4)}, v{TV+j}, s[96:99], s67 offen {WNT}"); vm.issue('w2')
    if extra:
        a(f"s_mov_b64 exec, -1\nv_mov_b32 v44, 0x40000000\nv_cmp_gt_u32 vcc, 32, v0\ns_add_u32 s14, s67, {128*1152}\ns_mov_b64 exec, s[68:69]")
        for j in range(8):
            a(f"v_cndmask_b32 v45, v44, v{TV+j}, vcc\nbuffer_load_dwordx4 {vr(R_X+j*4)}, v45, s[96:99], s14 offen {WNT}"); vm.issue('wx')
    a("s_mov_b64 exec, -1")
a.label("L_aux")
a(f"""
s_sub_u32 s3, s3, 4
s_lshl_b32 s62, s5, 3
s_add_u32 s62, s62, s6
s_add_u32 {CS}, s6, {"s4" if OPT['rot'] else "0"}
s_and_b32 {CS}, {CS}, 7
s_lshl_b32 s64, {CS}, 5
s_add_u32 s64, s64, s7
s_add_u32 s65, s64, 224
""")
if OPT['early']: tile_voffs(); tile_soffs()
a("s_cmp_eq_u32 s3, 1\ns_cbranch_scc1 L_qunit\ns_setprio 2\ns_cmp_lg_u32 s3, 0\ns_cbranch_scc1 L_aux23")
a(f"""
v_mov_b32 v4, 0
v_mov_b32 v5, {L_FLAG}
ds_write_b32 v5, v4
ds_write_b32 v5, v4 offset:4
v_mov_b32 v24, -1
v_mov_b32 v25, -1
v_mov_b32 v26, -1
v_mov_b32 v27, -1
""")
h_item('s64', 's10', 's11')
a(f"""
s_mul_i32 s10, s10, 36864
s_lshl_b32 s11, s11, 8
s_add_u32 s10, s10, s11
s_add_u32 s10, s10, {W_H}
""")
h_item('s65', 's11', 's13')
a(f"""
s_mul_i32 s11, s11, 36864
s_lshl_b32 s13, s13, 8
s_add_u32 s11, s11, s13
s_add_u32 s11, s11, {W_H}
s_and_b32 s8, s62, 3
s_lshl_b32 s8, s8, 8
s_lshr_b32 s9, s62, 2
s_lshl_b32 s9, s9, 10
s_add_u32 s8, s8, s9
s_lshl_b32 s9, s4, 13
s_add_u32 s8, s8, s9
s_add_u32 s8, s8, {W_Q}
v_and_b32 v6, 1, v3
v_lshlrev_b32 v7, 4, v2
v_lshl_add_u32 v8, v6, 12, v7
v_add_u32 v8, s8, v8
v_mul_u32_u24 v9, 18432, v6
v_add_u32 v9, v9, v7
v_add_u32 v10, s11, v9
v_add_u32 v9, s10, v9
v_cmp_gt_u32 vcc, 32, v0
v_cndmask_b32 v9, v9, v8, vcc
s_lshl_b32 s13, {CS}, 15
s_lshl_b32 s14, s4, 10
s_add_u32 s13, s13, s14
s_lshl_b32 s14, s5, 9
s_add_u32 s13, s13, s14
s_add_u32 s13, s13, {W_Y}
v_lshrrev_b32 v11, 5, v0
v_lshlrev_b32 v11, 14, v11
v_and_b32 v6, 31, v0
v_lshl_add_u32 v11, v6, 4, v11
s_lshl_b32 s8, s7, 13
s_lshl_b32 s9, s6, 10
s_add_u32 s8, s8, s9
v_lshlrev_b32 v12, 4, v0
s_lshl_b32 s9, s7, 7
s_lshl_b32 s14, s6, 3
s_add_u32 s9, s9, s14
s_add_u32 s9, s9, {W_ML}
v_lshlrev_b32 v13, 6, v0
s_mov_b32 s70, -1
s_cmp_eq_u32 {CS}, 7
s_cselect_b32 s70, 0, s70
s_mov_b32 s54, 0x40000000
s_mov_b32 s55, 0x20000
s_waitcnt lgkmcnt(0)
s_mov_b32 s52, s40
s_mov_b32 s53, s41
s_mov_b32 exec_hi, s70
buffer_store_dwordx4 v[24:27], v9, {WS}, 0 offen {SCB}
s_mov_b64 exec, -1
buffer_store_dwordx4 v[24:27], v12, {WS}, s8 offen {SCB}
buffer_store_dwordx4 v[24:27], v11, {WS}, s13 offen {SCB}
s_mov_b64 exec, 3
buffer_store_dwordx2 v[24:25], v13, {WS}, s9 offen {SCB}
s_cmp_lg_u32 s6, 0
s_cbranch_scc1 L_noctr
s_mov_b64 exec, 1
v_mov_b32 v28, 0
s_lshl_b32 s14, s7, 8
s_add_u32 s14, s14, {W_CTR}
buffer_store_dword v28, v28, {WS}, s14 offen {SCB}
L_noctr:
s_cmp_lt_u32 {CS}, 2
s_cbranch_scc0 L_noh2reset
s_mov_b32 exec_hi, 0
s_mov_b32 exec_lo, -1
buffer_store_dwordx4 v[24:27], v10, {WS}, 0 offen {SCB}
""")
a.label("L_noh2reset")
a("s_mov_b64 exec, -1")
if OPT['early']: tile_ptrs()
a("s_barrier")
vm = VM()
if OPT['early']:
    tile_issue(vm, True)
    nyoung = len(vm.q)
else: nyoung = 0
a(f"""
{"s_barrier" if OPT['holdx'] else ""}
s_mov_b64 exec, 1
s_lshl_b32 s11, s4, 4
v_mov_b32 v14, s11
v_mov_b32 v15, 1
s_waitcnt vmcnt({nyoung})
global_atomic_add v14, v15, s[38:39] sc1
ds_write_b32 v5, v15
{"s_barrier" if not OPT['holdx'] else ""}
""")
stamp(1)
def body():
    a("global_load_dword v16, v14, s[38:39] sc1\ns_waitcnt vmcnt(0)\nv_readfirstlane_b32 s8, v16\ns_cmp_ge_u32 s8, 16")
if OPT['famdelay']: a(f"s_sleep {OPT['famdelay']}")
if not OPT['nofam']: spin("fam", body, "s_cbranch_scc1", OPT['famsleep'])
stamp(2)
a(f"""
s_mov_b64 exec, -1
s_lshl_b32 s8, s4, 13
s_lshl_b32 s9, s5, 12
s_add_u32 s8, s8, s9
s_add_u32 s8, s8, {W_Q}
""")
QB = [16, 96]
def q_issue(k):
    for rg in range(4):
        a(f"buffer_load_dwordx4 {vr(QB[k]+4*rg)}, v12, {WS}, s8 offen offset:{rg*1024} {SCB}")
def q_post(k):
    b = QB[k]
    for c in range(4):
        a(f"v_add_f32 v{b+c}, v{b+c}, v{b+4+c}\nv_add_f32 v{b+8+c}, v{b+8+c}, v{b+12+c}\nv_add_f32 v{b+c}, v{b+c}, v{b+8+c}")
    a(f"""
v_cvt_pk_bf16_f32 v34, v{b}, v{b+1}
v_cvt_pk_bf16_f32 v35, v{b+2}, v{b+3}
v_lshlrev_b32 v33, 3, v0
ds_write_b64 v33, v[34:35] offset:{L_Q}
""")
if OPT['pp']:
    spin2("q", q_issue, 4, lambda k: anyinvalid(32, range(QB[k], QB[k]+16)), q_post, OPT['qsleep'])
else:
    def body():
        q_issue(0); a("s_waitcnt vmcnt(0)"); anyinvalid(32, range(16, 32))
    spin("q", body, "s_cbranch_vccz")
    q_post(0)
a("s_waitcnt lgkmcnt(0)")
stamp(3)
a("s_barrier\ns_branch L_aux2")

T0, T1, T2, T3, T4, T5, T6, T7 = 46, 47, 48, 49, 50, 51, 52, 53
def layernorm(vm):
    vm.wait('x')
    for k in range(10):
        a(f"v_lshlrev_b32 v{26+2*k}, 16, v{16+k}\nv_and_b32 v{27+2*k}, 0xffff0000, v{16+k}")
    a(f"v_add_f32 v{T0}, v26, v27\nv_add_f32 v{T1}, v28, v29")
    for k in range(4, 20, 2): a(f"v_add_f32 v{T0}, v{T0}, v{26+k}\nv_add_f32 v{T1}, v{T1}, v{27+k}")
    a(f"v_add_f32 v{T0}, v{T0}, v{T1}")
    rowreduce(T0, "v_add_f32"); xswap16(T0, T1, "v_add_f32")
    a(f"v_mul_f32 v{T0}, {f32(1.0/576):#x}, v{T0}")
    a(f"v_and_b32 v{T1}, 16, v0\nv_cmp_eq_u32 vcc, 0, v{T1}\nv_mov_b32 v{T2}, 0\nv_mov_b32 v{T4}, 0")
    for k in range(0, 20, 2):
        a(f"v_sub_f32 v{T3}, v{26+k}, v{T0}\nv_sub_f32 v{T5}, v{27+k}, v{T0}")
        if k >= 16: a(f"v_cndmask_b32 v{T3}, 0, v{T3}, vcc\nv_cndmask_b32 v{T5}, 0, v{T5}, vcc")
        a(f"v_fmac_f32 v{T2}, v{T3}, v{T3}\nv_fmac_f32 v{T4}, v{T5}, v{T5}")
    a(f"v_add_f32 v{T2}, v{T2}, v{T4}")
    rowreduce(T2, "v_add_f32"); xswap16(T2, T1, "v_add_f32")
    a(f"""
v_mul_f32 v{T2}, {f32(1.0/576):#x}, v{T2}
v_cvt_pk_bf16_f32 v{T1}, v{T0}, v{T2}
v_lshlrev_b32 v{T0}, 16, v{T1}
v_and_b32 v{T2}, 0xffff0000, v{T1}
v_add_f32 v{T2}, {f32(1e-5):#x}, v{T2}
v_cvt_pk_bf16_f32 v{T2}, v{T2}, v{T2}
v_lshlrev_b32 v{T2}, 16, v{T2}
v_sqrt_f32 v{T2}, v{T2}
v_cvt_pk_bf16_f32 v{T2}, v{T2}, v{T2}
v_lshlrev_b32 v{T2}, 16, v{T2}
v_rcp_f32 v{T2}, v{T2}
""")
    for k in range(10):
        t0, t1 = (T4, T5) if k % 2 == 0 else (T6, T7)
        a(f"v_sub_f32 v{t0}, v{26+2*k}, v{T0}\nv_sub_f32 v{t1}, v{27+2*k}, v{T0}")
        a(f"v_cvt_pk_bf16_f32 v{t0}, v{t0}, v{t1}")
        a(f"v_and_b32 v{t1}, 0xffff0000, v{t0}\nv_lshlrev_b32 v{t0}, 16, v{t0}")
        a(f"v_mul_f32 v{t0}, v{t0}, v{T2}\nv_mul_f32 v{t1}, v{t1}, v{T2}")
        a(f"v_cvt_pk_bf16_f32 v{16+k}, v{t0}, v{t1}")
    a(f"""
s_mul_i32 s13, s3, 3072
s_add_u32 s13, s13, {L_XN}
v_lshrrev_b32 v{T6}, 5, v0
v_mul_u32_u24 v{T6}, 1536, v{T6}
v_and_b32 v{T7}, 31, v0
v_lshl_add_u32 v{T6}, v{T7}, 3, v{T6}
v_add_u32 v{T6}, s13, v{T6}
""")
    for i in range(5): a(f"ds_write_b64 v{T6}, v[{16+2*i}:{17+2*i}] offset:{i*256}")
RING = [96, 128, 160]
def unit_addr(stride):
    a(f"""
v_lshrrev_b32 v6, 5, v0
v_mul_u32_u24 v6, 1152, v6
v_and_b32 v7, 31, v0
v_lshl_add_u32 v6, v7, 3, v6
v_add_u32 v7, 0x400, v6
v_and_b32 v8, 16, v0
v_cmp_eq_u32 vcc, 0, v8
v_mov_b32 v9, 0x40000000
v_cndmask_b32 v7, v9, v7, vcc
v_lshrrev_b32 v8, 3, v2
v_mul_u32_u24 v8, 72, v8
v_lshl_add_u32 v8, v3, 3, v8
v_mul_u32_u24 v8, {stride}, v8
v_and_b32 v10, 7, v2
v_lshl_add_u32 v8, v10, 4, v8
v_add_u32 v8, s8, v8
v_cmp_gt_u32 vcc, 16, v0
v_cndmask_b32 v5, v9, v8, vcc
""")
def unit_issue(vm, stride):
    for i in range(4):
        a(f"buffer_load_dwordx2 v[{16+2*i}:{17+2*i}], v6, s[44:47], 0 offen offset:{i*256}"); vm.issue('x')
    a("buffer_load_dwordx2 v[24:25], v7, s[44:47], 0 offen"); vm.issue('x')
    for j in range(1, 8): a(f"v_add_u32 v{8+j}, {stride}, v{8+j-1}")
    for st in range(3):
        if st == 2:
            a("v_mov_b32 v8, v5")
            for j in range(1, 8): a(f"v_add_u32 v{8+j}, {stride}, v{8+j-1}")
        a(f"s_mov_b32 s10, {st*32*stride}")
        for j in range(8):
            a(f"buffer_load_dwordx4 {vr(RING[st]+j*4)}, v{8+j}, s[48:51], s10 offen {WNT}"); vm.issue(('w', st))
def unit_compute(vm, srg, holdbar=False, st2=None):
    if holdbar and OPT['holdx'] == 2: a("s_barrier")
    if holdbar and OPT['holdx'] == 1:
        vm.wait('x'); vm.q.insert(0, 'x'); a("s_barrier")
    layernorm(vm)
    a(f"""
v_and_b32 v{T6}, 1, v2
v_mul_u32_u24 v{T6}, 1536, v{T6}
v_bfe_u32 v{T7}, v2, 1, 1
v_mul_u32_u24 v{T7}, 144, v{T7}
v_add_u32 v{T6}, v{T6}, v{T7}
v_lshl_add_u32 v{T6}, v3, 4, v{T6}
s_mul_i32 s9, {srg}, 288
s_add_u32 s9, s9, s13
v_add_u32 v{T6}, s9, v{T6}
s_waitcnt lgkmcnt(0)
""")
    for st in range(3): a(f"ds_read_b128 {vr(16+4*st)}, v{T6} offset:{st*64}")
    if st2 is not None: stamp(st2)
    a("s_waitcnt lgkmcnt(0)")
    for st in range(3):
        vm.wait(('w', st))
        if st == 2 and holdbar and OPT['holdx'] == 0: a("s_barrier")
        gemv_tile(RING[st], 16+4*st, st == 0)
    a("v_and_b32 v32, 8, v2\nv_cmp_ne_u32 vcc, 0, v32")
    for b in range(2):
        for e in range(8):
            a(f"v_cndmask_b32 v{16+b*8+e}, v{O+4*e+b}, v{O+4*e+2+b}, vcc")
    for k in range(16):
        a(f"v_add_f32_dpp v{16+k}, v{16+k}, v{16+k} row_ror:8 row_mask:0xf bank_mask:0xf")
    for k in range(16): a(f"v_min_u32 v{16+k}, -2, v{16+k}")
def unit_publish(bstride):
    a(f"""
s_add_u32 s9, s8, {bstride}
v_lshlrev_b32 v32, 5, v2
s_mov_b64 exec, 0xff
buffer_store_dwordx4 v[16:19], v32, {WS}, s8 offen {SCB}
buffer_store_dwordx4 v[20:23], v32, {WS}, s8 offen offset:16 {SCB}
buffer_store_dwordx4 v[24:27], v32, {WS}, s9 offen {SCB}
buffer_store_dwordx4 v[28:31], v32, {WS}, s9 offen offset:16 {SCB}
s_mov_b64 exec, -1
""")

a.label("L_qunit")
a(f"""
s_setprio 3
s_lshr_b32 s15, s62, 2
s_mul_i32 s9, s15, {144*8192}
s_lshl_b32 s8, s4, 9
s_add_u32 s8, s8, s9
s_and_b32 s9, s62, 3
s_lshl_b32 s9, s9, 7
s_add_u32 s8, s8, s9
""")
unit_addr(8192)
a(f"""
s_mov_b32 s46, 2304
s_mov_b32 s47, 0x20000
s_mov_b32 s50, {576*8192}
s_mov_b32 s51, 0x20000
s_mov_b32 s54, 0x40000000
s_mov_b32 s55, 0x20000
s_waitcnt lgkmcnt(0)
s_mov_b32 s44, s16
s_mov_b32 s45, s17
s_mov_b32 s48, s22
s_mov_b32 s49, s23
s_mov_b32 s52, s40
s_mov_b32 s53, s41
""")
if OPT['early']: tile_ptrs()
a("s_barrier")
vm = VM()
unit_issue(vm, 8192)
if OPT['early']: tile_issue(vm, False)
stamp(1)
unit_compute(vm, 's15', holdbar=True, st2=2)
def body():
    a(f"v_mov_b32 v33, {L_FLAG}\nds_read_b32 v34, v33\ns_waitcnt lgkmcnt(0)\nv_readfirstlane_b32 s8, v34\ns_cmp_eq_u32 s8, 1")
spin("rst1", body, "s_cbranch_scc1")
a(f"""
s_and_b32 s8, s62, 3
s_lshl_b32 s8, s8, 8
s_lshl_b32 s9, s15, 10
s_add_u32 s8, s8, s9
s_lshl_b32 s9, s4, 13
s_add_u32 s8, s8, s9
s_add_u32 s8, s8, {W_Q}
""")
unit_publish(4096)
stamp(3)
a("s_barrier\ns_branch L_aux2")

a.label("L_aux23")
a(f"""
s_mov_b32 s71, 0
s_cmp_eq_u32 s3, 2
s_cbranch_scc0 L_aux3sel
s_cmp_lt_u32 {CS}, 7
s_cselect_b32 s71, 1, 0
s_branch L_auxsel_done
""")
a.label("L_aux3sel")
a(f"s_mov_b32 s64, s65\ns_cmp_lt_u32 {CS}, 2\ns_cselect_b32 s71, 1, 0")
a.label("L_auxsel_done")
h_item('s64', 's15', 's70')
a(f"""
s_mul_i32 s8, s15, {144*9216}
s_lshl_b32 s9, s70, 7
s_add_u32 s8, s8, s9
""")
unit_addr(9216)
a(f"""
s_mov_b32 s46, 2304
s_mov_b32 s47, 0x20000
s_mov_b32 s50, {576*9216}
s_cmp_eq_u32 s71, 0
s_cselect_b32 s50, 0, s50
s_cselect_b32 s46, 0, s46
s_mov_b32 s51, 0x20000
s_mov_b32 s54, 0x40000000
s_mov_b32 s55, 0x20000
s_waitcnt lgkmcnt(0)
s_mov_b32 s44, s16
s_mov_b32 s45, s17
s_mov_b32 s48, s28
s_mov_b32 s49, s29
s_mov_b32 s52, s40
s_mov_b32 s53, s41
""")
if OPT['early']: tile_ptrs()
a("s_barrier")
vm23 = VM()
if OPT['hearly'] == 3:
    def body():
        a(f"v_mov_b32 v33, {L_FLAG}\nds_read_b32 v34, v33\ns_waitcnt lgkmcnt(0)\nv_readfirstlane_b32 s8, v34\ns_cmp_eq_u32 s8, 1")
    spin("rst23", body, "s_cbranch_scc1")
if OPT['hearly'] in (2, 3): unit_issue(vm23, 9216)
if OPT['early']: tile_issue(vm23, False)
a("s_barrier")
if OPT['hearly'] == 1: unit_issue(vm23, 9216)
a("s_barrier")
if OPT['hearly'] == 0:
    a("s_cmp_eq_u32 s71, 0\ns_cbranch_scc1 L_aux2")
    unit_issue(vm23, 9216)
a("s_cmp_eq_u32 s71, 0\ns_cbranch_scc1 L_aux2")
unit_compute(vm23, 's15')
a(f"""
s_mul_i32 s8, s15, 36864
s_lshl_b32 s9, s70, 8
s_add_u32 s8, s8, s9
s_add_u32 s8, s8, {W_H}
""")
unit_publish(18432)
a("s_branch L_aux2")

a.label("L_att_main")
stamp(1)
a("s_barrier")
stamp(2)
a(f"""
v_and_b32 v6, 1, v2
v_lshlrev_b32 v6, 8, v6
v_lshl_add_u32 v6, v3, 4, v6
""")
for jj in range(4): a(f"ds_read_b128 {vr(Q+jj*4)}, v6 offset:{L_Q+jj*64}")
for k in range(32): a(f"v_mov_b32 v{O+k}, 0")
a("v_mov_b32 v8, 0xff800000\nv_mov_b32 v9, 0\nv_mov_b32 v10, 0\ns_waitcnt lgkmcnt(0)")
def p_qk_mfma(K):
    for jj in range(4):
        for t in range(2):
            D = vr((S0, S1)[t])
            a(f"v_mfma_f32_16x16x32_bf16 {D}, {vr(K+(t*4+jj)*4)}, {vr(Q+jj*4)}, {'0' if jj == 0 else D}")
def p_soft():
    uid[0] += 1
    if OPT['mimic']:
        for jj in range(4): a(f"v_cvt_pk_bf16_f32 v{P+jj}, v{S0+2*jj}, v{S0+2*jj+1}")
        for jj in range(4): a(f"v_lshlrev_b32 v{S0+2*jj}, 16, v{P+jj}\nv_and_b32 v{S0+2*jj+1}, 0xffff0000, v{P+jj}")
        for e in range(8): a(f"v_mul_f32 v{S0+e}, s69, v{S0+e}")
        for jj in range(4): a(f"v_cvt_pk_bf16_f32 v{P+jj}, v{S0+2*jj}, v{S0+2*jj+1}")
        for jj in range(4): a(f"v_lshlrev_b32 v{S0+2*jj}, 16, v{P+jj}\nv_and_b32 v{S0+2*jj+1}, 0xffff0000, v{P+jj}")
    a(f"v_max3_f32 v11, v{S0}, v{S0+1}, v{S0+2}")
    a(f"v_max3_f32 v11, v11, v{S0+3}, v{S1}")
    a(f"v_max3_f32 v11, v11, v{S1+1}, v{S1+2}")
    a(f"v_max3_f32 v11, v11, v{S1+3}, v8")
    xreduce(11, 12, "v_max_f32")
    a(f"v_cmp_gt_f32 vcc, v11, v8")
    a(f"s_cbranch_vccz L_nors{uid[0]}")
    a(f"v_sub_f32 v12, v8, v11\nv_mul_f32 v12, {SC}, v12\nv_exp_f32 v12, v12\nv_mov_b32 v8, v11")
    a(f"v_mul_f32 v10, {SC}, v11\nv_sub_f32 v10, 0, v10")
    a("v_mul_f32 v9, v9, v12")
    for k in range(32): a(f"v_mul_f32 v{O+k}, v{O+k}, v12")
    a.label(f"L_nors{uid[0]}")
    for e in range(8): a(f"v_fma_f32 v{S0+e}, v{S0+e}, {SC}, v10")
    for e in range(8): a(f"v_exp_f32 v{S0+e}, v{S0+e}")
    for jj in range(4): a(f"v_cvt_pk_bf16_f32 v{P+jj}, v{S0+2*jj}, v{S0+2*jj+1}")
    a(f"v_add_f32 v12, v{S0}, v{S0+1}\nv_add_f32 v13, v{S0+2}, v{S0+3}\nv_add_f32 v14, v{S0+4}, v{S0+5}\nv_add_f32 v15, v{S0+6}, v{S0+7}")
    a("v_add_f32 v12, v12, v13\nv_add_f32 v14, v14, v15\nv_add_f32 v9, v9, v12\nv_add_f32 v9, v9, v14")
def p_pv(V):
    perm_mfma(V, lambda e, X: a(f"v_mfma_f32_16x16x32_bf16 {vr(O+e*4)}, {vr(X)}, {vr(P)}, {vr(O+e*4)}"))
def kslot(slot): return slot ^ 1 if OPT['k3'] else slot
def process(slot, prefetch, wK, wV, claim=False, dynoff=False, drain=None):
    K = KB[kslot(slot)]; V = VB[slot]
    a(f"s_waitcnt vmcnt({wK})")
    L3 = OPT['lead3']
    if dynoff and not L3: a(f"v_readfirstlane_b32 s8, v{224+slot}")
    p_qk_mfma(K)
    if dynoff and L3: a(f"s_waitcnt vmcnt(16)\nv_readfirstlane_b32 s8, v{224+(slot^1)}")
    if dynoff:
        NS = OPT['dyn']
        a(f"""
{"s_bfe_u32 s9, s8, 0x30002" if OPT['pm'] else "s_and_b32 s9, s8, 7"}
s_lshl_b32 s9, s9, 20
{"s_and_b32 s10, s8, 3" if OPT['pm'] else "s_bfe_u32 s10, s8, 0x20003"}
s_lshl_b32 s10, s10, 13
s_add_u32 s9, s9, s10
s_lshr_b32 s10, s8, 5
s_add_u32 s10, s10, {NS}
s_lshl_b32 s10, s10, 15
s_add_u32 s10, s10, s67
s_and_b32 s10, s10, 0xf8000
s_add_u32 s56, s9, s10
s_add_u32 s57, s56, 4096
s_cmp_lt_u32 s8, {32*(32-NS)}
s_cselect_b32 s{64+slot}, 1, 0
s_cbranch_scc0 {drain}
""")
    if claim:
        a(f"s_mov_b64 exec, 1\nv_mov_b32 v{224+slot}, 1\nbuffer_atomic_add v{224+slot}, v226, {WS}, s62 offen sc0 sc1\ns_mov_b64 exec, -1")
    LATE = OPT['late']
    if prefetch and not LATE: issueK(kslot(slot))
    p_soft()
    if LATE and prefetch: wV -= 8
    a(f"s_waitcnt vmcnt({wV})")
    p_pv(V)
    if prefetch:
        if LATE: issueK(kslot(slot))
        issueV(slot)
        if not dynoff: advance()
stamp(3)
NPEEL = 0
if OPT['k3']:
    assert OPT['dyn'] and not OPT['late']
    NPEEL = 4
    def koff_next():
        a("s_add_u32 s68, s63, 0x8000\ns_and_b32 s68, s68, 0xf8000\ns_add_u32 s70, s66, s68\ns_add_u32 s71, s70, 4096")
    a("s_waitcnt vmcnt(32)"); p_qk_mfma(KB[0]); koff_next(); issueKb(KB[0], 70); p_soft(); a("s_waitcnt vmcnt(32)"); p_pv(VB[0]); issueV(0); advance()
    a("s_waitcnt vmcnt(32)"); p_qk_mfma(KB[1]); koff_next(); issueKb(KB[1], 70); p_soft(); a("s_waitcnt vmcnt(32)"); p_pv(VB[1]); issueV(1); advance()
    a("s_waitcnt vmcnt(32)"); p_qk_mfma(KX); p_soft(); a("s_waitcnt vmcnt(16)"); p_pv(VB[0]); issueV(0); advance()
    a("s_waitcnt vmcnt(24)"); p_qk_mfma(KB[0]); issueK(0); p_soft(); a("s_waitcnt vmcnt(16)"); p_pv(VB[1]); issueV(1); advance()
    a("v_mov_b32 v226, 0")
if not OPT['dyn']:
    a("s_mov_b32 s61, 15")
    a.label("L_att_loop")
    process(0, True, 24, 24); process(1, True, 24, 24)
    a("s_sub_u32 s61, s61, 1\ns_cmp_lg_u32 s61, 0\ns_cbranch_scc1 L_att_loop")
    process(0, False, 24, 16); process(1, False, 8, 0)
else:
    NS = OPT['dyn']
    assert OPT['lead3'] or NS % 2 == 0
    nloop = ((NS - 4 - NPEEL) // 2)
    a(f"s_mov_b32 s61, {nloop}\ns_mov_b32 s64, 1\ns_mov_b32 s65, 1")
    a.label("L_att_loop")
    process(0, True, 24, 24); process(1, True, 24, 24)
    a("s_sub_u32 s61, s61, 1\ns_cmp_lg_u32 s61, 0\ns_cbranch_scc1 L_att_loop")
    n = NPEEL + 2*nloop
    if OPT['lead3']:
        while n < NS - 3:
            process(n % 2, True, 24, 24); n += 1
        process(n % 2, True, 24, 25, claim=True); n += 1
    else:
        process(0, True, 24, 25, claim=True)
        process(1, True, 25, 26, claim=True)
        n += 2
    f = n % 2
    a.label("L_dyn_loop")
    process(f, True, 25, 26, claim=True, dynoff=True, drain=f"L_drain{f}")
    process(f^1, True, 25, 26, claim=True, dynoff=True, drain=f"L_drain{f^1}")
    a("s_branch L_dyn_loop")
    for sl in range(2):
        a.label(f"L_drain{sl}")
        p_soft(); a(f"s_waitcnt vmcnt({16 if OPT['lead3'] else 17})"); p_pv(VB[sl])
        a(f"s_cmp_eq_u32 s{64+(sl^1)}, 0\ns_cbranch_scc1 L_dyn_done")
        a("s_waitcnt vmcnt(8)"); p_qk_mfma(KB[kslot(sl^1)]); p_soft(); a("s_waitcnt vmcnt(0)"); p_pv(VB[sl^1])
        if sl == 0: a("s_branch L_dyn_done")
    a.label("L_dyn_done")
stamp(4)
xreduce(9, 12, "v_add_f32")
a(f"""
s_lshl_b32 s8, s3, 10
v_and_b32 v6, 1, v2
v_lshlrev_b32 v6, 9, v6
v_lshl_add_u32 v6, v3, 7, v6
v_add_u32 v6, s8, v6
s_lshl_b32 s8, s3, 4
v_lshlrev_b32 v7, 3, v2
v_add_u32 v7, s8, v7
v_add_u32 v6, {L_AO}, v6
s_mov_b32 exec_lo, 0x00030003
s_mov_b32 exec_hi, 0x00030003
""")
for r in range(4):
    for e in range(0, 8, 2):
        a(f"ds_write2_b32 v6, v{O+4*e+r}, v{O+4*(e+1)+r} offset0:{r*8+e} offset1:{r*8+e+1}")
a(f"s_mov_b64 exec, 3\nds_write_b64 v7, v[8:9] offset:{L_AML}")
a("s_waitcnt lgkmcnt(0)\ns_barrier")
if DBG:
    stamp(5)
    a("s_cmp_lg_u32 s3, 0\ns_cbranch_scc1 L_end")
    a("s_waitcnt lgkmcnt(0) vmcnt(0)\ns_mov_b64 exec, 1")
    a(f"s_lshl_b32 s12, s2, 8\ns_add_u32 s12, s12, {0x200000}\nv_mov_b32 v4, 0")
    for k in range(6):
        a(f"v_mov_b32 v5, s{72+2*k}\nbuffer_store_dword v5, v4, {WS}, s12 offen offset:{k*4}")
a("s_endpgm")

a.label("L_aux2")
if not OPT['early']:
    vmx = VM()
    tile_soffs(); tile_ptrs()
    tile_voffs()
    a("s_cmp_eq_u32 s3, 0\ns_cbranch_scc0 L_lt1")
    tile_issue(vmx, True)
    a("s_branch L_lt2")
    a.label("L_lt1")
    tile_issue(VM(), False)
    a.label("L_lt2")
for _ in range(OPT['hdelay']): a("s_sleep 127")
a("s_waitcnt vmcnt(0)")
WX = 160
for i in range(4):
    for hlf, sel in enumerate((SEL_LO, SEL_HI)):
        for jj in range(4):
            a(f"v_perm_b32 v{WX + (2*i+hlf)*4 + jj}, v{R_WO+(2*jj+1)*4+i}, v{R_WO+(2*jj)*4+i}, {sel}")
if OPT['all0']: a("s_cmp_lg_u32 s3, 0\ns_cbranch_scc1 L_allwait")
a("v_lshlrev_b32 v4, 4, v2")
def body():
    a("global_load_dword v30, v4, s[38:39] sc1\ns_waitcnt vmcnt(0)\nv_cmp_gt_u32 vcc, 16, v30")
spin("all", body, "s_cbranch_vccz", OPT["slowsleep"])
if OPT['all0']:
    a(f"v_mov_b32 v30, {L_FLAG}\nv_mov_b32 v31, 1\nds_write_b32 v30, v31 offset:4\ns_branch L_alldone")
    a.label("L_allwait")
    def body():
        a(f"v_mov_b32 v30, {L_FLAG}\nds_read_b32 v31, v30 offset:4\ns_waitcnt lgkmcnt(0)\nv_readfirstlane_b32 s8, v31\ns_cmp_eq_u32 s8, 1")
    spin("allw", body, "s_cbranch_scc1", 4)
    a.label("L_alldone")
a(f"""
v_lshrrev_b32 v4, 5, v0
v_mul_u32_u24 v4, 18432, v4
v_and_b32 v5, 31, v0
v_lshl_add_u32 v4, v5, 2, v4
s_lshl_b32 s8, s63, 2
s_add_u32 s8, s8, {W_H}
s_add_u32 s9, s8, 36864
s_add_u32 s10, s8, {2*36864}
s_add_u32 s11, s8, {3*36864}
s_mov_b32 s48, s30
s_mov_b32 s49, s31
s_mov_b32 s50, 9216
s_mov_b32 s51, 0x20000
v_lshlrev_b32 v6, 1, v5
s_lshl_b32 s13, s63, 1
buffer_load_ushort v24, v6, s[48:51], s13 offen
buffer_load_ushort v25, v6, s[48:51], s13 offen offset:256
v_add_u32 v7, 512, v4
v_cmp_gt_u32 vcc, 16, v5
v_mov_b32 v26, 0x40000000
v_cndmask_b32 v7, v26, v7, vcc
s_cmp_eq_u32 s3, 0
s_cselect_b32 s13, 0, 0x40000000
v_add_u32 v7, s13, v7
""")
def body():
    for rg, so in enumerate(('s8', 's9', 's10', 's11')):
        a(f"buffer_load_dword v{16+rg}, v4, {WS}, {so} offen {SCB}")
    for rg, so in enumerate(('s8', 's9', 's10', 's11')):
        a(f"buffer_load_dword v{20+rg}, v7, {WS}, {so} offen {SCB}")
    a("s_waitcnt vmcnt(0)")
    anyinvalid(26, range(16, 24))
spin("h", body, "s_cbranch_vccz", OPT["slowsleep"])
def h_finish(p, b1, dst):
    a(f"""
v_add_f32 v{p}, v{p}, v{p+1}
v_add_f32 v{p+2}, v{p+2}, v{p+3}
v_add_f32 v{p}, v{p}, v{p+2}
v_lshlrev_b32 v{b1}, 16, v{b1}
v_cvt_pk_bf16_f32 v{p}, v{p}, v{p}
v_lshlrev_b32 v{p}, 16, v{p}
v_add_f32 v{p}, v{p}, v{b1}
v_cvt_pk_bf16_f32 v{p}, v{p}, v{p}
v_lshlrev_b32 v{p}, 16, v{p}
v_max_f32 v{p}, 0, v{p}
v_mul_f32 v{p}, v{p}, v{p}
v_cvt_pk_bf16_f32 v{dst}, v{p}, v{p}
""")
h_finish(16, 24, 26); h_finish(20, 25, 27)
a(f"""
s_lshl_b32 s13, s3, 9
s_add_u32 s13, s13, {L_OB}
v_lshl_add_u32 v6, v0, 1, s13
ds_write_b16 v6, v26
ds_write_b16 v6, v27 offset:128
v_and_b32 v7, 1, v2
v_lshlrev_b32 v7, 6, v7
v_lshl_add_u32 v7, v3, 4, v7
v_add_u32 v7, s13, v7
s_waitcnt lgkmcnt(0)
ds_read_b128 v[16:19], v7
ds_read_b128 v[20:23], v7 offset:128
s_waitcnt lgkmcnt(0)
""")
gemv_tile(R_W2, 16, True)
a("s_cmp_eq_u32 s3, 0\ns_cbranch_scc0 L_no_x2")
gemv_tile(R_X, 20, False)
a.label("L_no_x2")
stamp(4)
a(f"s_cmp_lg_u32 s3, 1\ns_cbranch_scc1 L_nobase\ns_lshl_b32 s8, {CS}, 1\ns_cmp_lg_u32 s8, s4\ns_cbranch_scc1 L_nobase")
a(f"""
s_mov_b32 s48, s34
s_mov_b32 s49, s35
s_mov_b32 s50, 1152
s_mov_b32 s51, 0x20000
s_lshl_b32 s8, {CS}, 7
v_and_b32 v5, 31, v0
v_lshlrev_b32 v5, 3, v5
buffer_load_dwordx2 v[24:25], v5, s[48:51], s8 offen
s_mul_i32 s9, s5, 1152
s_add_u32 s8, s8, s9
s_mov_b32 s44, s16
s_mov_b32 s45, s17
s_mov_b32 s46, 2304
s_mov_b32 s47, 0x20000
buffer_load_dwordx2 v[26:27], v5, s[44:47], s8 offen
s_waitcnt vmcnt(0)
""")
for k in range(2):
    a(f"""
v_lshlrev_b32 v{28+2*k}, 16, v{24+k}
v_and_b32 v{29+2*k}, 0xffff0000, v{24+k}
v_lshlrev_b32 v46, 16, v{26+k}
v_and_b32 v47, 0xffff0000, v{26+k}
v_add_f32 v{28+2*k}, v{28+2*k}, v46
v_add_f32 v{29+2*k}, v{29+2*k}, v47
""")
a.label("L_nobase")
stamp(5)
a(f"""
v_lshrrev_b32 v4, 5, v0
v_lshlrev_b32 v5, 11, v4
v_lshlrev_b32 v4, 17, v4
v_and_b32 v6, 31, v0
v_lshl_add_u32 v4, v6, 2, v4
s_lshl_b32 s8, s4, 13
s_lshl_b32 s9, s5, 9
s_add_u32 s8, s8, s9
s_lshl_b32 s9, s3, 7
s_add_u32 s8, s8, s9
s_add_u32 s9, s8, 4096
s_lshl_b32 s10, s4, 7
s_lshl_b32 s11, s5, 6
s_add_u32 s10, s10, s11
s_add_u32 s10, s10, {W_ML}
s_barrier
""")
stamp(6)
a("s_cmp_lg_u32 s3, 0\ns_cbranch_scc1 L_l1")
a(f"""
v_lshlrev_b32 v6, 4, v0
v_lshrrev_b32 v7, 5, v0
v_lshlrev_b32 v7, 3, v7
""")
for w in range(4):
    a(f"ds_read_b128 {vr(96+4*w)}, v6 offset:{L_AO + w*1024}")
    a(f"ds_read_b64 v[{112+2*w}:{113+2*w}], v7 offset:{L_AML + w*16}")
a(f"""
s_lshl_b32 s12, s7, 13
s_lshl_b32 s13, s6, 10
s_add_u32 s12, s12, s13
s_lshl_b32 s13, s7, 7
s_lshl_b32 s14, s6, 3
s_add_u32 s13, s13, s14
s_add_u32 s13, s13, {W_ML}
v_lshlrev_b32 v7, 1, v0
s_waitcnt lgkmcnt(0)
v_max3_f32 v120, v112, v114, v116
v_max_f32 v120, v120, v118
""")
for w in range(4): a(f"v_sub_f32 v{122+w}, v{112+2*w}, v120")
for w in range(4): a(f"v_mul_f32 v{122+w}, {SC}, v{122+w}")
for w in range(4): a(f"v_exp_f32 v{122+w}, v{122+w}")
a("v_mul_f32 v121, v122, v113")
for k in range(4): a(f"v_mul_f32 v{128+k}, v122, v{96+k}")
for w in range(1, 4):
    a(f"v_fmac_f32 v121, v{122+w}, v{113+2*w}")
    for k in range(4): a(f"v_fmac_f32 v{128+k}, v{122+w}, v{96+4*w+k}")
for k in range(4): a(f"v_min_u32 v{128+k}, -2, v{128+k}")
a(f"""
v_min_u32 v120, -2, v120
v_min_u32 v121, -2, v121
buffer_store_dwordx4 v[128:131], v6, {WS}, s12 offen {SCB}
s_mov_b32 exec_lo, 1
s_mov_b32 exec_hi, 1
buffer_store_dwordx2 v[120:121], v7, {WS}, s13 offen {SCB}
s_mov_b64 exec, -1
""")
if OPT['dbg2']:
    stamp(1); a("s_waitcnt vmcnt(1)"); stamp(4); a("s_waitcnt vmcnt(0)"); stamp(2)
if OPT['light']:
    a(f"""
v_lshrrev_b32 v132, 2, v0
v_lshlrev_b32 v132, 11, v132
v_and_b32 v133, 3, v0
v_lshl_add_u32 v132, v133, 4, v132
v_cmp_gt_u32 vcc, 8, v0
v_mov_b32 v133, 0x40000000
v_cndmask_b32 v132, v133, v132, vcc
""")
    def body():
        a(f"buffer_load_dwordx4 v[136:139], v132, {WS}, s10 offen {SCB}\ns_waitcnt vmcnt(0)")
        anyinvalid(133, range(136, 140))
    spin("lp", body, "s_cbranch_vccz", OPT['lsleep'])
a.label("L_l1")
if OPT['light']: a("s_barrier")
LB = [96, 192]
def l1_issue(k):
    b = LB[k]
    for s_ in range(8):
        a(f"buffer_load_dword v{b+s_}, v4, {WS}, {'s8' if s_ < 4 else 's9'} offen offset:{(s_%4)*1024} {SCB}")
    for kk in range(4):
        a(f"buffer_load_dwordx4 {vr(b+8+4*kk)}, v5, {WS}, s10 offen offset:{kk*16} {SCB}")
def l1_post(k):
    b = LB[k]; m = b + 8
    stamp(7)
    a(f"v_max3_f32 v120, v{m}, v{m+2}, v{m+4}\nv_max3_f32 v120, v120, v{m+6}, v{m+8}\nv_max3_f32 v120, v120, v{m+10}, v{m+12}\nv_max_f32 v120, v120, v{m+14}")
    for s_ in range(8): a(f"v_sub_f32 v{122+s_}, v{m+2*s_}, v120")
    for s_ in range(8): a(f"v_mul_f32 v{122+s_}, {SC}, v{122+s_}")
    for s_ in range(8): a(f"v_exp_f32 v{122+s_}, v{122+s_}")
    a(f"v_mul_f32 v121, v122, v{m+1}\nv_mul_f32 v130, v122, v{b}")
    for s_ in range(1, 8):
        a(f"v_fmac_f32 v121, v{122+s_}, v{m+1+2*s_}\nv_fmac_f32 v130, v{122+s_}, v{b+s_}")
a(f"""
s_lshl_b32 s13, s3, 9
s_add_u32 s13, s13, {L_OB}
v_lshl_add_u32 v6, v0, 1, s13
v_and_b32 v7, 1, v2
v_lshlrev_b32 v7, 6, v7
v_lshl_add_u32 v7, v3, 4, v7
v_add_u32 v7, s13, v7
""")
if OPT['pp']:
    spin2("l1", l1_issue, 12, lambda k: anyinvalid(120, range(LB[k], LB[k]+24)), l1_post, OPT['ppsleep'])
else:
    def body():
        if OPT['dbg2']: stamp(3)
        l1_issue(0); a("s_waitcnt vmcnt(0)"); anyinvalid(120, range(96, 120))
    spin("l1", body, "s_cbranch_vccz")
    l1_post(0)
a(f"""
v_rcp_f32 v121, v121
v_mul_f32 v130, v130, v121
v_cvt_pk_bf16_f32 v130, v130, v130
ds_write_b16 v6, v130
s_waitcnt lgkmcnt(0)
ds_read_b128 v[132:135], v7
s_waitcnt lgkmcnt(0)
""")
for e in range(8):
    D = vr(O+4*e)
    a(f"v_mfma_f32_16x16x32_bf16 {D}, {vr(132)}, {vr(WX+e*4)}, {D}")
a(f"s_lshl_b32 s12, s3, 10\ns_add_u32 s12, s12, {L_YP}\nv_lshl_add_u32 v6, v2, 5, s12\ns_mov_b64 exec, 0xffff")
for b in range(2):
    for e in range(0, 8, 2):
        a(f"ds_write2_b32 v6, v{O+4*e+b}, v{O+4*(e+1)+b} offset0:{b*128+e} offset1:{b*128+e+1}")
a("s_mov_b64 exec, -1\ns_waitcnt lgkmcnt(0)\ns_barrier")
stamp(8)
a("s_cmp_eq_u32 s3, 1\ns_cbranch_scc1 L_final\ns_cmp_lg_u32 s3, 0\ns_cbranch_scc1 L_endaux")
a("v_lshlrev_b32 v6, 4, v0")
for w in range(4): a(f"ds_read_b128 {vr(136+4*w)}, v6 offset:{L_YP + w*1024}")
a(f"""
s_lshl_b32 s13, {CS}, 15
s_lshl_b32 s14, s4, 10
s_add_u32 s13, s13, s14
s_lshl_b32 s14, s5, 9
s_add_u32 s13, s13, s14
s_add_u32 s13, s13, {W_Y}
v_lshrrev_b32 v11, 5, v0
v_lshlrev_b32 v11, 14, v11
v_and_b32 v7, 31, v0
v_lshl_add_u32 v11, v7, 4, v11
s_mov_b32 s14, 0x0000ffff
s_cmp_eq_u32 {CS}, 7
s_cselect_b32 s14, -1, s14
s_waitcnt lgkmcnt(0)
""")
for k in range(4):
    a(f"v_add_f32 v{136+k}, v{136+k}, v{140+k}\nv_add_f32 v{144+k}, v{144+k}, v{148+k}")
for k in range(4):
    a(f"v_add_f32 v{136+k}, v{136+k}, v{144+k}")
for k in range(4): a(f"v_min_u32 v{136+k}, -2, v{136+k}")
a(f"""
s_mov_b32 exec_lo, s14
s_mov_b32 exec_hi, s14
buffer_store_dwordx4 v[136:139], v11, {WS}, s13 offen {SCB}
s_branch L_endaux
""")
a.label("L_final")
a(f"""
s_lshl_b32 s8, {CS}, 1
s_cmp_lg_u32 s8, s4
s_cbranch_scc1 L_endaux
s_lshl_b32 s8, {CS}, 15
s_lshl_b32 s9, s5, 14
s_add_u32 s8, s8, s9
s_add_u32 s8, s8, {W_Y}
s_add_u32 s9, s8, 4096
v_lshrrev_b32 v4, 5, v0
v_lshlrev_b32 v4, 13, v4
v_and_b32 v5, 31, v0
v_lshl_add_u32 v4, v5, 4, v4
s_mov_b32 s14, 0x0000ffff
s_cmp_eq_u32 {CS}, 7
s_cselect_b32 s14, -1, s14
s_mov_b32 exec_lo, s14
s_mov_b32 exec_hi, s14
""")
FB = [96, 192]
def f_issue(k):
    for kk in range(16):
        a(f"buffer_load_dwordx4 {vr(FB[k]+4*kk)}, v4, {WS}, {'s8' if kk < 8 else 's9'} offen offset:{(kk%8)*512} {SCB}")
def f_post(k):
    b = FB[k]
    for st in (1, 2, 4):
        for kk in range(0, 16, 2*st):
            for c in range(4):
                a(f"v_add_f32 v{b+4*kk+c}, v{b+4*kk+c}, v{b+4*(kk+st)+c}")
    for c in range(4): a(f"v_add_f32 v{164+c}, v{b+c}, v{b+32+c}")
if OPT['pp']:
    spin2("fin", f_issue, 16, lambda k: anyinvalid(160, range(FB[k], FB[k]+64)), f_post, OPT['ppsleep'])
else:
    def body():
        f_issue(0); a("s_waitcnt vmcnt(0)"); anyinvalid(160, range(96, 160))
    spin("fin", body, "s_cbranch_vccz")
    f_post(0)
a("s_mov_b64 exec, -1")
for c in range(4): xswap32(164+c, 160+c, "v_add_f32")
for c in range(4): a(f"v_add_f32 v{164+c}, v{164+c}, v{28+c}")
a(f"""
v_cvt_pk_bf16_f32 v168, v164, v165
v_cvt_pk_bf16_f32 v169, v166, v167
s_mov_b32 s48, s36
s_mov_b32 s49, s37
s_mov_b32 s50, 2304
s_mov_b32 s51, 0x20000
s_lshl_b32 s8, {CS}, 7
s_mul_i32 s9, s5, 1152
s_add_u32 s8, s8, s9
v_lshlrev_b32 v5, 3, v5
s_mov_b32 exec_lo, s14
s_mov_b32 exec_hi, 0
buffer_store_dwordx2 v[168:169], v5, s[48:51], s8 offen {'sc0 sc1' if OPT['outsc'] else ''}
""")
a.label("L_endaux")
if DBG:
    stamp(9)
    a("s_waitcnt lgkmcnt(0) vmcnt(0)\ns_mov_b64 exec, 1")
    a(f"s_lshl_b32 s12, s2, 9\ns_lshl_b32 s13, s3, 6\ns_add_u32 s12, s12, s13\ns_add_u32 s12, s12, {0x280000}\nv_mov_b32 v4, 0")
    for k in range(10):
        a(f"v_mov_b32 v5, s{72+2*k}\nbuffer_store_dword v5, v4, {WS}, s12 offen offset:{k*4}")
a.label("L_end")
a("s_endpgm")

DOC = '''; Design (one launch, 256 workgroups x 8 waves, one workgroup per CU; workgroup = (batch b, kv head, key split s)):
'''
ref = open('cdna_kernels/' + NAME + '.s.ref').read().split('\n')
hdr = [l for l in ref if l.startswith(';') and '@launch' not in l]
out = "\n".join(hdr) + f"\n; @launch grid=(256,1,1) block=(512,1,1) lds={LDS_BYTES}\n" + DOC
out += f""".amdgcn_target "amdgcn-amd-amdhsa--gfx950"
.text
.globl {NAME}_kernel
.p2align 8
.type {NAME}_kernel,@function
{NAME}_kernel:
""" + a.text() + f""".section .rodata,"a"
.p2align 6
.amdhsa_kernel {NAME}_kernel
  .amdhsa_next_free_vgpr 256
  .amdhsa_next_free_sgpr 102
  .amdhsa_accum_offset 256
  .amdhsa_group_segment_fixed_size 0
  .amdhsa_kernarg_size 104
  .amdhsa_user_sgpr_count 2
  .amdhsa_user_sgpr_kernarg_segment_ptr 1
  .amdhsa_system_sgpr_workgroup_id_x 1
.end_amdhsa_kernel
"""
open(sys.argv[1], 'w').write(out)
print("lines", len(a.lines), "nops", a.nops)
```
